```python
import torch

def _softmax(x, axis=-1):
    return torch.softmax(x, dim=axis)
def _gelu(x):
    return torch.nn.functional.gelu(x, approximate="tanh")
def _silu(x):
    return torch.nn.functional.silu(x)
def _sigmoid(x):
    return torch.sigmoid(x)
def _layernorm(x, axis=-1, eps=1e-5):
    m = x.mean(dim=axis, keepdim=True)
    v = x.var(dim=axis, keepdim=True, unbiased=False)
    return (x - m) / torch.sqrt(v + eps)
def _scatter_add(tgt, idx, src, axis=0):
    return tgt.clone().index_add_(axis, idx, src)
def _segment_sum(src, seg, n):
    out = torch.zeros((n,) + src.shape[1:], dtype=src.dtype)
    return out.index_add_(0, seg, src)
def _pad(x, pw):
    flat = tuple(v for pair in reversed(pw) for v in pair)
    return torch.nn.functional.pad(x, flat)

kernel_name = 'standalone__moe_arch_mod__sampling'

def setup_inputs():

    _w = (lambda a: (lambda t: t.to(torch.bfloat16) if t.is_floating_point() else t)(torch.as_tensor(a)))
    B, S, D, F, C = 8, 32, 1024, 3584, 1
    return {
        "x": _w((lambda *s: torch.randn(*s, dtype=torch.bfloat16) * 0.1)(B, S, D)),
        "w_r": _w((lambda *s: torch.randn(*s, dtype=torch.bfloat16) * 0.1)(D)),
        "w_gate": _w((lambda *s: torch.randn(*s, dtype=torch.bfloat16) * 0.1)(D, F)),
        "w_up": _w((lambda *s: torch.randn(*s, dtype=torch.bfloat16) * 0.1)(D, F)),
        "w_down": _w((lambda *s: torch.randn(*s, dtype=torch.bfloat16) * 0.1)(F, D)),
    }

def reference(x, w_r, w_gate, w_up, w_down):
    B, S, D = x.shape
    C = 1
    r = x @ w_r
    idx = torch.argsort(-r, axis=-1)[:, :C]
    idx_e = (lambda x, n, axis: torch.repeat_interleave(x, n, dim=axis))(idx.reshape(B, C, 1), D, axis=2)
    x_sel = (lambda x, i, axis: torch.take_along_dim(x, i, dim=axis))(x, idx_e, axis=1)
    g = _silu(x_sel @ w_gate)
    u = x_sel @ w_up
    y = (g * u) @ w_down
    r_sel = _sigmoid((lambda x, i, axis: torch.take_along_dim(x, i, dim=axis))(r, idx, axis=1))
    y = y * r_sel.reshape(B, C, 1)
    b_off = (torch.arange(B) * S).reshape(B, 1)
    flat_idx = (idx + b_off).reshape(B * C)
    zero = (x * 0.0).reshape(B * S, D)
    upd = _scatter_add(zero, flat_idx, y.reshape(B * C, D), axis=0)
    return x + upd.reshape(B, S, D)
```

```python
import sys, argparse

KN = "standalone__moe_arch_mod__sampling_kernel"
WB = 1024*3584*2
XBYTES = 8*32*1024*2

L_B = 0
L_C = 65536
L_X = 98304
XP = 1056
L_H = L_X + 8*XP
HP = 160
L_END = L_H + 8*HP

W_P = 0
W_Y = 56*8*2048
W_E = W_Y + 256*7168
W_END = W_E + 256
W_DIAG = 4 << 20

TAGM = 0x3ff

class G:
    def __init__(s, a):
        s.a = a; s.L = []; s.nst = 0; s.uid = 0
    def e(s, t): s.L.append("    " + t)
    def lab(s, t): s.L.append(t + ":")
    def c(s, t): s.L.append("    ; " + t)
    def u(s, p):
        s.uid += 1; return f"{p}_{s.uid}"
    def stamp(s, k, wait=True):
        if s.a.diag:
            s.e(f"s_memrealtime s[{70+2*k}:{71+2*k}]")
            if wait: s.e("s_waitcnt lgkmcnt(0)")

def gen(a):
    g = G(a); e = g.e; D = a.depth
    NT = a.nt
    ST = a.st
    LD = a.ld
    g.stamp(0, wait=False)
    if a.diag:
        for k in range(1, 10): e(f"s_mov_b32 s{70+2*k}, 0")
    e("s_load_dwordx16 s[4:19], s[0:1], 0")
    e("s_cmp_ge_u32 s2, 256")
    e("s_cbranch_scc1 L_end")
    e("v_lshrrev_b32 v1, 6, v0")
    e("v_and_b32 v0, 63, v0")
    e("s_and_b32 s20, s2, 7")
    e("v_readfirstlane_b32 s3, v1")
    e("s_lshr_b32 s21, s2, 3")
    e("s_mov_b32 s24, 0")
    e("s_mov_b32 s25, 0")
    e("s_and_b32 s23, s21, 3")
    e("s_cmp_eq_u32 s20, 4")
    e("s_cbranch_scc1 L_special")
    e("s_cmp_gt_u32 s20, 4")
    e("s_subb_u32 s26, s20, 0")
    e("s_lshl_b32 s26, s26, 3")
    e("s_lshr_b32 s27, s21, 2")
    e("s_cmp_lt_u32 s21, 12")
    e("s_cbranch_scc1 L_dec")
    e("s_sub_u32 s27, s27, 1")
    e("s_cmp_ge_u32 s21, 20")
    e("s_cbranch_scc1 L_dec")
    e("s_mov_b32 s27, 3")
    e("s_sub_u32 s23, s21, 12")
    e("s_mov_b32 s24, 1")
    e("s_branch L_dec")
    g.lab("L_special")
    e("s_lshr_b32 s26, s21, 2")
    e("s_lshl_b32 s26, s26, 3")
    e("s_mov_b32 s27, 7")
    e("s_cmp_ge_u32 s21, 28")
    e("s_cselect_b32 s25, 1, 0")
    g.lab("L_dec")
    e("s_add_u32 s22, s26, s27")
    e("s_cmp_eq_u32 s3, 4")
    e("s_cbranch_scc1 L_ctl")
    e("s_cmp_eq_u32 s25, 1")
    e("s_cbranch_scc1 L_end")
    e("v_bfe_u32 v1, v0, 1, 2")
    e("v_bfe_u32 v2, v0, 3, 1")
    e("v_lshl_add_u32 v1, v2, 3, v1")
    e("v_lshrrev_b32 v2, 4, v0")
    e("v_and_b32 v3, 1, v0")
    e("v_lshl_add_u32 v3, v2, 1, v3")
    e("v_lshlrev_b32 v3, 4, v3")
    e("v_mul_u32_u24 v4, 7168, v1")
    e("v_add_u32 v4, v4, v3")
    e("v_lshl_add_u32 v5, v1, 11, v3")
    e("s_and_b32 s28, s3, 1")
    e("s_lshl_b32 s28, s28, 4")
    e("s_lshr_b32 s29, s3, 1")
    e("s_lshl_b32 s29, s29, 2")
    e("s_add_u32 s28, s28, s29")
    e("s_cmp_eq_u32 s24, 1")
    e("s_cselect_b32 s30, 2, 1")
    e("s_cselect_b32 s31, 3, 1")
    e("s_cselect_b32 s32, 8, 9")
    e("s_lshr_b32 s33, s23, s30")
    e("s_and_b32 s34, s23, s31")
    e("s_lshl_b32 s35, s34, s32")
    e("s_add_u32 s36, s35, s28")
    e("s_mul_i32 s36, s36, 7168")
    e("s_lshl_b32 s37, s22, 7")
    e("s_add_u32 s36, s36, s37")
    e("s_lshl_b32 s37, s3, 10")
    e("s_mov_b32 m0, s37")
    e("s_lshr_b32 s38, s23, s24")
    e("s_lshl_b32 s38, s38, 2")
    e("s_add_u32 s38, s38, s3")
    e("s_lshl_b32 s39, s22, 17")
    e("s_lshl_b32 s40, s38, 7")
    e("s_add_u32 s39, s39, s40")
    e("s_and_b32 s41, s23, s24")
    e("s_waitcnt lgkmcnt(0)")
    g.stamp(1)
    e("s_cmp_eq_u32 s33, 1")
    e("s_cselect_b32 s44, s10, s8")
    e("s_cselect_b32 s45, s11, s9")
    e(f"s_mov_b32 s46, {WB}")
    e("s_mov_b32 s47, 0x20000")
    e("s_mov_b32 s48, s12")
    e("s_mov_b32 s49, s13")
    e(f"s_mov_b32 s50, {WB}")
    e("s_mov_b32 s51, 0x20000")
    e("s_cmp_eq_u32 s24, 1")
    e("s_cbranch_scc1 L_slow")

    def cload(j):
        rows = 32*(j >> 2) + (0, 16, 4, 20)[j & 3]
        e(f"s_add_u32 m0, s42, {j*1024}")
        e(f"s_add_u32 s43, s39, {rows*2048}")
        e(f"buffer_load_dwordx4 v5, s[48:51], s43 offen {NT} lds")

    def bphase(nb, d, tag):
        n1 = nb*3//4
        half = nb//2
        e(f"s_mov_b32 s43, {nb}")
        g.lab(f"L_bl{tag}")
        e(f"s_waitcnt vmcnt({d-1})")
        e(f"buffer_load_dwordx4 v4, s[44:47], s36 offen {NT} lds")
        e(f"s_add_u32 s36, s36, {32*7168}")
        e("s_add_u32 m0, m0, 4096")
        e("s_sub_u32 s43, s43, 1")
        e("s_cmp_lg_u32 s43, 0")
        e(f"s_cbranch_scc1 L_bl{tag}")
        e("s_lshl_b32 s42, s3, 13")
        e(f"s_add_u32 s42, s42, {L_C}")
        e("v_lshrrev_b32 v1, 5, v0")
        e("v_and_b32 v3, 31, v0")
        e("v_lshlrev_b32 v6, 3, v3")
        e("v_lshl_add_u32 v6, v1, 10, v6")
        e("v_add_u32 v7, s42, v6")
        e("s_lshl_b32 s43, s3, 8")
        e("v_add_u32 v6, s43, v6")
        e("v_and_b32 v8, 7, v0")
        e("v_bfe_u32 v9, v0, 3, 1")
        e(f"v_mul_u32_u24 v10, {XP}, v8")
        e("v_lshl_add_u32 v10, v2, 4, v10")
        e(f"v_mul_u32_u24 v11, {half*64}, v9")
        e("v_add_u32 v10, v10, v11")
        if nb == 8:
            e("s_and_b32 s43, s34, 1")
            e("s_lshl_b32 s43, s43, 9")
            e(f"s_add_u32 s43, s43, {L_X}")
            e("v_add_u32 v10, s43, v10")
        else:
            e(f"v_add_u32 v10, {L_X}, v10")
        nc_early = max(0, min(8, n1 - 1 + d + 1 - nb))
        skipc = g.u("L_noc")
        if nb == 8:
            e("s_cmp_eq_u32 s41, 1")
            e(f"s_cbranch_scc1 {skipc}a")
        for j in range(nc_early):
            e(f"s_waitcnt vmcnt({d-1})")
            cload(j)
        e(f"s_waitcnt vmcnt({nb - n1 + nc_early})")
        if nb == 8:
            e(f"s_branch {skipc}b")
            g.lab(f"{skipc}a")
            e(f"s_waitcnt vmcnt({nb - n1})")
            g.lab(f"{skipc}b")
        g.stamp(2)
        e("s_barrier")
        g.stamp(3)
        if nb == 8:
            e("s_cmp_eq_u32 s41, 1")
            e(f"s_cbranch_scc1 {skipc}c")
        for j in range(nc_early, 8):
            cload(j)
        if nb == 8:
            g.lab(f"{skipc}c")
        XF = 16
        WF = 48
        ops = []
        need = []
        e(f"ds_read_b32 v12, v13 offset:{L_END}") if False else None
        seq = []
        for f in range(half):
            seq.append(("x", f))
        order = []
        for k in range(n1):
            if k < half: order.append(f"ds_read_b128 v[{XF+4*k}:{XF+4*k+3}], v10 offset:{k*64}")
            order.append(f"ds_read_b64_tr_b16 v[{WF+4*k}:{WF+4*k+1}], v6 offset:{k*4096}")
            order.append(f"ds_read_b64_tr_b16 v[{WF+4*k+2}:{WF+4*k+3}], v6 offset:{k*4096+2048}")
            need.append(len(order))
        issued = 0
        def issue_upto(n):
            nonlocal issued
            while issued < min(n, len(order)):
                e(order[issued]); issued += 1
        def mfma(k):
            acc = 112 if k < half else 116
            xf = XF + 4*(k % half)
            cin = "0" if k in (0, half) else f"v[{acc}:{acc+3}]"
            e(f"v_mfma_f32_16x16x32_bf16 v[{acc}:{acc+3}], v[{WF+4*k}:{WF+4*k+3}], v[{xf}:{xf+3}], {cin}")
        for k in range(n1):
            issue_upto(need[k] + 12 - 3)
            e(f"s_waitcnt lgkmcnt({issued - need[k]})")
            mfma(k)
        if nb == 8:
            e("s_cmp_eq_u32 s41, 1")
            e(f"s_cbranch_scc1 {skipc}d")
        e("s_waitcnt vmcnt(8)")
        if nb == 8:
            e(f"s_branch {skipc}e")
            g.lab(f"{skipc}d")
            e("s_waitcnt vmcnt(0)")
            g.lab(f"{skipc}e")
        g.stamp(4)
        e("s_barrier")
        for k in range(n1, nb):
            e(f"ds_read_b64_tr_b16 v[{WF+4*k}:{WF+4*k+1}], v6 offset:{k*4096}")
            e(f"ds_read_b64_tr_b16 v[{WF+4*k+2}:{WF+4*k+3}], v6 offset:{k*4096+2048}")
        for k in range(n1, nb):
            e(f"s_waitcnt lgkmcnt({2*(nb-1-k)})")
            mfma(k)

    bphase(16, D, "n")
    e("s_branch L_pub")
    g.lab("L_slow")
    bphase(8, max(2, (D+1)//2), "s")
    g.lab("L_pub")
    e(f"v_mov_b32 v13, {L_END}")
    e("ds_read_b32 v12, v13")
    e("s_lshl_b32 s43, s22, 3")
    e("s_lshl_b32 s52, s33, 2")
    e("s_add_u32 s52, s52, s43")
    e("s_add_u32 s52, s52, s34")
    e("s_lshl_b32 s52, s52, 11")
    e("s_lshl_b32 s53, s3, 6")
    e("s_add_u32 s52, s52, s53")
    e(f"s_add_u32 s56, s18, {a.wsoff}")
    e("s_addc_u32 s57, s19, 0")
    e(f"s_mov_b32 s58, {W_END}")
    e("s_mov_b32 s59, 0x20000")
    e("v_lshlrev_b32 v14, 8, v8")
    e("v_lshl_add_u32 v14, v2, 4, v14")
    e(f"v_mov_b32 v15, {TAGM}")
    e("s_nop 1")
    for r in range(4):
        e(f"v_add_f32_dpp v{112+r}, v{116+r}, v{112+r} row_ror:8 row_mask:0xf bank_mask:0xf")
    e("s_waitcnt lgkmcnt(0)")
    for r in range(4):
        e(f"v_bfi_b32 v{112+r}, v15, v12, v{112+r}")
    e("s_mov_b32 exec_lo, 0x00ff00ff")
    e("s_mov_b32 exec_hi, 0x00ff00ff")
    e(f"buffer_store_dwordx4 v[112:115], v14, s[56:59], s52 offen {ST}")
    e("s_mov_b64 exec, -1")
    g.stamp(5)
    e("s_cmp_eq_u32 s41, 1")
    e("s_cbranch_scc1 L_cdone")
    e("s_lshl_b32 s52, s43, 11")
    e("s_lshl_b32 s53, s3, 9")
    e("s_add_u32 s52, s52, s53")
    e("s_add_u32 s53, s52, 8192")
    e("s_add_u32 s54, s52, 4096")
    e("s_add_u32 s55, s53, 4096")
    e("v_lshlrev_b32 v14, 3, v0")
    e(f"v_mul_u32_u24 v16, {HP}, v8")
    e("v_lshl_add_u32 v16, v2, 4, v16")
    e(f"v_add_u32 v16, {L_H}, v16")
    e("s_lshl_b32 s60, s3, 1")
    e("v_add_u32 v17, s60, v1")
    e(f"v_mul_u32_u24 v17, {HP}, v17")
    e("v_lshl_add_u32 v17, v3, 2, v17")
    e(f"v_add_u32 v17, {L_H}, v17")
    e("s_waitcnt vmcnt(1)")
    for ks in range(2):
        for tt in range(4):
            r = 48 + 16*ks + 4*tt
            e(f"ds_read_b64_tr_b16 v[{r}:{r+1}], v7 offset:{ks*4096+tt*256}")
            e(f"ds_read_b64_tr_b16 v[{r+2}:{r+3}], v7 offset:{ks*4096+tt*256+2048}")
    g.stamp(6)
    e(f"s_mov_b32 s61, {a.spin}")
    g.lab("L_g2")
    e(f"buffer_load_dwordx2 v[20:21], v14, s[56:59], s52 offen {LD}")
    e(f"buffer_load_dwordx2 v[22:23], v14, s[56:59], s52 offen offset:2048 {LD}")
    e(f"buffer_load_dwordx2 v[24:25], v14, s[56:59], s53 offen {LD}")
    e(f"buffer_load_dwordx2 v[26:27], v14, s[56:59], s53 offen offset:2048 {LD}")
    e("s_cmp_eq_u32 s24, 1")
    e("s_cbranch_scc0 L_g2n")
    e(f"buffer_load_dwordx2 v[28:29], v14, s[56:59], s54 offen {LD}")
    e(f"buffer_load_dwordx2 v[30:31], v14, s[56:59], s54 offen offset:2048 {LD}")
    e(f"buffer_load_dwordx2 v[32:33], v14, s[56:59], s55 offen {LD}")
    e(f"buffer_load_dwordx2 v[34:35], v14, s[56:59], s55 offen offset:2048 {LD}")
    e("s_waitcnt vmcnt(0)")
    e("v_xor_b32 v18, v28, v12")
    for r in range(29, 36):
        e(f"v_bitop3_b32 v18, v18, v{r}, v12 bitop3:0xf6")
    e("v_add_f32 v20, v20, v28") if False else None
    e("s_branch L_g2c")
    g.lab("L_g2n")
    e("v_mov_b32 v18, 0")
    for r in range(28, 36):
        e(f"v_mov_b32 v{r}, 0")
    e("s_waitcnt vmcnt(0)")
    g.lab("L_g2c")
    for r in range(20, 28):
        e(f"v_bitop3_b32 v18, v18, v{r}, v12 bitop3:0xf6")
    e("v_and_b32 v18, v15, v18")
    e("v_cmp_ne_u32 vcc, 0, v18")
    e("s_cbranch_vccz L_g2ok")
    e("s_sub_u32 s61, s61, 1")
    e("s_cmp_lg_u32 s61, 0")
    e("s_cbranch_scc1 L_g2")
    g.lab("L_g2ok")
    g.stamp(7)
    e("v_add_f32 v20, v20, v22"); e("v_add_f32 v21, v21, v23")
    e("v_add_f32 v24, v24, v26"); e("v_add_f32 v25, v25, v27")
    e("v_add_f32 v28, v28, v30"); e("v_add_f32 v29, v29, v31")
    e("v_add_f32 v32, v32, v34"); e("v_add_f32 v33, v33, v35")
    e("v_add_f32 v20, v20, v28"); e("v_add_f32 v21, v21, v29")
    e("v_add_f32 v24, v24, v32"); e("v_add_f32 v25, v25, v33")
    e("v_cvt_pk_bf16_f32 v22, v20, v21")
    e("v_cvt_pk_bf16_f32 v26, v24, v25")
    e("v_lshlrev_b32 v20, 16, v22")
    e("v_and_b32 v21, 0xffff0000, v22")
    e("v_mul_f32 v28, 0xbfb8aa3b, v20")
    e("v_mul_f32 v29, 0xbfb8aa3b, v21")
    e("v_exp_f32 v28, v28")
    e("v_exp_f32 v29, v29")
    e("v_lshlrev_b32 v24, 16, v26")
    e("v_add_f32 v28, 1.0, v28")
    e("v_add_f32 v29, 1.0, v29")
    e("v_rcp_f32 v28, v28")
    e("v_rcp_f32 v29, v29")
    e("v_and_b32 v25, 0xffff0000, v26")
    e("v_mul_f32 v20, v20, v28")
    e("v_mul_f32 v21, v21, v29")
    e("v_cvt_pk_bf16_f32 v22, v20, v21")
    e("v_lshlrev_b32 v20, 16, v22")
    e("v_and_b32 v21, 0xffff0000, v22")
    e("v_mul_f32 v20, v20, v24")
    e("v_mul_f32 v21, v21, v25")
    e("v_cvt_pk_bf16_f32 v22, v20, v21")
    e("ds_write_b32 v17, v22")
    e("s_waitcnt lgkmcnt(0)")
    e("s_barrier")
    e("ds_read_b128 v[20:23], v16")
    e("ds_read_b128 v[24:27], v16 offset:64")
    e("s_mov_b32 s60, 229376")
    e("v_mul_lo_u32 v14, v8, s60")
    e("v_lshl_add_u32 v14, v9, 6, v14")
    e("v_lshl_add_u32 v14, v2, 4, v14")
    e(f"s_mul_i32 s52, s38, {2*7168}")
    e("s_lshl_b32 s53, s22, 7")
    e("s_add_u32 s52, s52, s53")
    e(f"s_add_u32 s52, s52, {W_Y}")
    e("s_add_u32 s53, s52, 7168")
    e("v_cmp_eq_u32 vcc, 1, v9")
    e("s_waitcnt lgkmcnt(1)")
    for tt in range(4):
        e(f"v_mfma_f32_16x16x32_bf16 v[{80+4*tt}:{83+4*tt}], v[{48+4*tt}:{51+4*tt}], v[20:23], 0")
    e("s_waitcnt lgkmcnt(0)")
    for tt in range(4):
        e(f"v_mfma_f32_16x16x32_bf16 v[{80+4*tt}:{83+4*tt}], v[{64+4*tt}:{67+4*tt}], v[24:27], v[{80+4*tt}:{83+4*tt}]")
    e("s_nop 5")
    for r in range(4):
        e(f"v_cndmask_b32 v{80+r}, v{80+r}, v{84+r}, vcc")
    for r in range(4):
        e(f"v_bfi_b32 v{80+r}, v15, v12, v{80+r}")
    e(f"buffer_store_dwordx4 v[80:83], v14, s[56:59], s52 offen {ST}")
    for r in range(4):
        e(f"v_cndmask_b32 v{88+r}, v{88+r}, v{92+r}, vcc")
    for r in range(4):
        e(f"v_bfi_b32 v{88+r}, v15, v12, v{88+r}")
    e(f"buffer_store_dwordx4 v[88:91], v14, s[56:59], s53 offen {ST}")
    g.stamp(8)
    e("s_barrier")
    g.lab("L_cdone")
    if a.diag:
        e("s_branch L_diag")
    e("s_endpgm")

    g.lab("L_ctl")
    e("s_setprio 3")
    e("s_sub_u32 s26, s20, 1")
    e("s_lshl_b32 s27, s26, 5")
    e("s_add_u32 s27, s27, s21")
    e("v_lshlrev_b32 v1, 2, v0")
    e("v_and_b32 v2, 15, v0")
    e("v_lshrrev_b32 v3, 4, v0")
    e("v_lshlrev_b32 v4, 4, v2")
    e("v_lshl_add_u32 v5, v3, 11, v4")
    e("s_lshl_b32 s28, s27, 13")
    e("s_waitcnt lgkmcnt(0)")
    g.stamp(1)
    e("s_mov_b32 s44, s4"); e("s_mov_b32 s45, s5"); e(f"s_mov_b32 s46, {XBYTES}"); e("s_mov_b32 s47, 0x20000")
    e("s_mov_b32 s52, s16"); e("s_mov_b32 s53, s17"); e("s_mov_b32 s54, 256"); e("s_mov_b32 s55, 0x20000")
    e("s_cmp_lt_u32 s26, 2")
    e("s_cbranch_scc0 L_poll0")
    e("s_mov_b32 s48, s6"); e("s_mov_b32 s49, s7"); e("s_mov_b32 s50, 2048"); e("s_mov_b32 s51, 0x20000")
    for n in range(8):
        e(f"buffer_load_dwordx4 v[{16+4*n}:{19+4*n}], v5, s[44:47], s28 offen offset:{n*256}")
        e(f"buffer_load_dwordx4 v[{48+4*n}:{51+4*n}], v4, s[48:51], 0 offen offset:{n*256}")
    g.lab("L_poll0")
    e(f"s_add_u32 s56, s18, {a.wsoff}")
    e("s_addc_u32 s57, s19, 0")
    e(f"s_mov_b32 s58, {W_END}")
    e("s_mov_b32 s59, 0x20000")
    e("s_mov_b32 s60, s14"); e("s_mov_b32 s61, s15"); e(f"s_mov_b32 s62, {XBYTES}"); e("s_mov_b32 s63, 0x20000")
    e("s_cmp_lt_u32 s26, 2")
    e("s_cbranch_scc0 L_poll")
    e("s_mov_b32 s29, 0")
    e("s_cmp_eq_u32 s27, 0")
    e("s_cbranch_scc0 L_noep")
    e(f"s_mov_b32 s30, {W_E}")
    e(f"s_load_dword s29, s[56:57], s30 glc")
    e("s_waitcnt lgkmcnt(0)")
    e("s_add_u32 s29, s29, 1")
    e("v_mov_b32 v7, s29")
    e(f"s_and_b32 s29, s29, {TAGM}")
    e("s_lshl_b32 s29, s29, 1")
    g.lab("L_noep")
    e("s_and_b32 s30, s27, 7")
    e("s_lshl_b32 s30, s30, 2")
    e("s_sub_u32 s30, 31, s30")
    e("v_sub_u32 v6, s30, v3")
    e("v_lshlrev_b32 v6, 11, v6")
    e("s_or_b32 s29, s29, 1")
    e("v_or_b32 v6, s29, v6")
    for n in range(8):
        e(f"s_waitcnt vmcnt({14-2*n})")
        for r in range(4):
            src = "0" if n == 0 else f"v{8+r}"
            e(f"v_dot2_f32_bf16 v{8+r}, v{16+4*n+r}, v{48+4*n+r}, {src}")
    e("s_nop 2")
    e("v_add_f32 v8, v8, v9"); e("v_add_f32 v10, v10, v11")
    e("s_nop 0")
    e("v_add_f32 v8, v8, v10")
    for sh in (8, 4, 2, 1):
        e("s_nop 1")
        e(f"v_add_f32_dpp v8, v8, v8 row_ror:{sh} row_mask:0xf bank_mask:0xf")
    e("v_cvt_pk_bf16_f32 v9, v8, v8")
    e("v_cmp_u_f32 vcc, v8, v8")
    e("v_ashrrev_i32 v10, 31, v9")
    e("v_or_b32 v10, 0x80000000, v10")
    e("v_xor_b32 v9, v9, v10")
    e("v_cndmask_b32 v9, v9, 0, vcc")
    e("v_and_or_b32 v9, v9, s64, v6") if False else None
    e("v_and_b32 v9, 0xffff0000, v9")
    e("v_or_b32 v9, v9, v6")
    e("s_nop 0")
    e("v_readlane_b32 s30, v9, 0")
    e("v_readlane_b32 s31, v9, 16")
    e("v_readlane_b32 s32, v9, 32")
    e("v_readlane_b32 s33, v9, 48")
    e("s_max_u32 s30, s30, s31")
    e("s_max_u32 s32, s32, s33")
    e("s_max_u32 s30, s30, s32")
    e("s_lshl_b32 s31, s27, 2")
    e("v_mov_b32 v9, s30")
    e("s_mov_b64 exec, 1")
    e(f"buffer_store_dword v9, v1, s[52:55], s31 offen {ST}")
    e("s_cmp_eq_u32 s27, 0")
    e("s_cbranch_scc0 L_noep2")
    e(f"s_mov_b32 s30, {W_E}")
    e("buffer_store_dword v7, v1, s[56:59], s30 offen sc1")
    g.lab("L_noep2")
    e("s_mov_b64 exec, -1")
    g.stamp(2)
    g.lab("L_poll")
    e(f"s_mov_b32 s34, {a.spin}")
    NP = a.npoll
    for k in range(NP-1):
        e(f"buffer_load_dword v{80+k}, v1, s[52:55], 0 offen {LD}")
        e(f"s_sleep {a.psleep}")
    g.lab("L_pl")
    for k in range(NP):
        e(f"buffer_load_dword v{80+(k+NP-1)%NP}, v1, s[52:55], 0 offen {LD}")
        e(f"s_waitcnt vmcnt({NP-1})")
        e(f"v_cmp_eq_u32 vcc, 0, v{80+k}")
        e(f"v_mov_b32 v14, v{80+k}")
        e("s_cbranch_vccz L_pok")
        if NP > 1: e(f"s_sleep {a.psleep}")
    e("s_sub_u32 s34, s34, 1")
    e("s_cmp_lg_u32 s34, 0")
    e("s_cbranch_scc1 L_pl")
    g.lab("L_pok")
    g.stamp(3)
    e("v_readlane_b32 s35, v14, 0")
    e("s_nop 0")
    e("v_max_u32_dpp v14, v14, v14 quad_perm:[1,0,3,2] row_mask:0xf bank_mask:0xf")
    e("s_nop 1")
    e("v_max_u32_dpp v14, v14, v14 quad_perm:[2,3,0,1] row_mask:0xf bank_mask:0xf")
    e("s_nop 1")
    e("v_max_u32_dpp v14, v14, v14 row_half_mirror row_mask:0xf bank_mask:0xf")
    e("v_lshrrev_b32 v13, 3, v0")
    e("v_bfe_u32 v15, v14, 11, 5")
    e("v_lshl_add_u32 v13, v13, 5, 31")
    e("v_sub_u32 v13, v13, v15")
    e("v_lshlrev_b32 v15, 11, v13")
    e("s_bfe_u32 s35, s35, 0xa0001")
    e("s_and_b32 s36, s23, 1")
    e("s_bfe_u32 s37, s23, 0x10001")
    e("s_cmp_eq_u32 s24, 1")
    e("s_cselect_b32 s36, s37, s36")
    e("s_lshl_b32 s36, s36, 10")
    e("v_lshlrev_b32 v7, 4, v0")
    e("v_add_u32 v7, s36, v7")
    for b in range(8):
        e(f"v_readlane_b32 s{64+b if not a.diag else 92+b}, v15, {8*b}")
    e("s_cmp_eq_u32 s25, 1")
    e("s_cbranch_scc1 L_nox")
    e(f"s_mov_b32 m0, {L_X}")
    e("v_mov_b32 v12, s35")
    e(f"v_mov_b32 v11, {L_END}")
    e("ds_write_b32 v11, v12")
    for b in range(8):
        e(f"buffer_load_dwordx4 v7, s[44:47], s{64+b if not a.diag else 92+b} offen lds")
        if b < 7:
            e(f"s_add_u32 m0, m0, {XP}")
            e("s_nop 0")
    g.lab("L_nox")
    e("s_lshr_b32 s38, s2, 5")
    e("s_lshl_b32 s38, s38, 3")
    e("s_nop 0")
    e("v_readlane_b32 s39, v15, s38")
    e("v_readlane_b32 s40, v14, s38")
    e("s_and_b32 s41, s2, 31")
    e("s_lshl_b32 s41, s41, 6")
    e("s_add_u32 s39, s39, s41")
    e("v_and_b32 v8, 7, v0")
    e("v_lshlrev_b32 v8, 3, v8")
    e("v_bfe_u32 v9, v0, 4, 1")
    e("v_lshl_add_u32 v8, v9, 2, v8")
    e("v_lshrrev_b32 v9, 5, v0")
    e("v_lshl_add_u32 v8, v9, 1, v8")
    e("buffer_load_ushort v10, v8, s[44:47], s39 offen")
    e("s_cmp_eq_u32 s25, 1")
    e("s_cbranch_scc1 L_nobar")
    e("s_waitcnt vmcnt(1) lgkmcnt(0)")
    g.stamp(4)
    e("s_barrier")
    g.lab("L_nobar")
    e("s_cmp_lt_u32 s26, 2")
    e("s_cbranch_scc0 L_nocopy")
    e("s_and_b32 s30, s27, 0x38")
    e("s_nop 0")
    e("v_readlane_b32 s31, v13, s30")
    e("s_lshl_b32 s30, s27, 2")
    e("v_add_u32 v9, s30, v3")
    e("s_mov_b32 s32, 0x7f807f80")
    e("s_mov_b32 s33, 0x00400040")
    e("v_cmp_ne_u32 vcc, s31, v9")
    e("s_and_saveexec_b64 s[42:43], vcc")
    for n in range(8):
        for r in range(4):
            v = 16+4*n+r
            e(f"v_and_b32 v48, s32, v{v}")
            e("v_add_u32 v48, 0x00800080, v48")
            e("v_lshrrev_b32 v48, 9, v48")
            e(f"v_and_or_b32 v{v}, v48, s33, v{v}")
        e(f"buffer_store_dwordx4 v[{16+4*n}:{19+4*n}], v5, s[60:63], s28 offen offset:{n*256} {a.ost}")
    e("s_mov_b64 exec, -1")
    g.lab("L_nocopy")
    e("v_mov_b32 v11, s40")
    e("v_ashrrev_i32 v12, 31, v11")
    e("v_not_b32 v12, v12")
    e("v_or_b32 v12, 0x80000000, v12")
    e("v_xor_b32 v11, v11, v12")
    e("v_and_b32 v11, 0xffff0000, v11")
    e("v_mul_f32 v11, 0xbfb8aa3b, v11")
    e("v_exp_f32 v11, v11")
    e("v_mov_b32 v12, s35")
    e("v_add_f32 v11, 1.0, v11")
    e("v_rcp_f32 v11, v11")
    e(f"s_mul_i32 s30, s2, 7168")
    e("v_cvt_pk_bf16_f32 v11, v11, v11")
    e(f"s_add_u32 s30, s30, {W_Y}")
    e("v_and_b32 v11, 0xffff0000, v11")
    e("s_add_u32 s31, s30, 4096")
    e("v_lshlrev_b32 v7, 4, v0")
    e("s_cmp_eq_u32 s25, 1")
    e("s_cbranch_scc1 L_red")
    e("s_barrier")
    e("s_and_b32 s41, s23, s24")
    e("s_cmp_eq_u32 s41, 1")
    e("s_cbranch_scc1 L_red")
    e("s_barrier")
    e("s_barrier")
    g.lab("L_red")
    g.stamp(5)
    e(f"s_mov_b32 s34, {a.spin}")
    g.lab("L_rl")
    for n in range(7):
        so = "s30" if n < 4 else "s31"
        e(f"buffer_load_dwordx4 v[{16+4*n}:{19+4*n}], v7, s[56:59], {so} offen offset:{(n%4)*1024} {LD}")
    for n in range(7):
        e(f"s_waitcnt vmcnt({6-n})")
        for r in range(4):
            v = 16+4*n+r
            if n == 0 and r == 0: e(f"v_xor_b32 v9, v{v}, v12")
            else: e(f"v_bitop3_b32 v9, v9, v{v}, v12 bitop3:0xf6")
        if n:
            e(f"v_pk_add_f32 v[16:17], v[16:17], v[{16+4*n}:{17+4*n}]")
            e(f"v_pk_add_f32 v[18:19], v[18:19], v[{18+4*n}:{19+4*n}]")
    e(f"v_and_b32 v9, {TAGM}, v9")
    e("v_cmp_ne_u32 vcc, 0, v9")
    e("s_cbranch_vccz L_rok")
    e("s_sub_u32 s34, s34, 1")
    e("s_cmp_lg_u32 s34, 0")
    e("s_cbranch_scc1 L_rl")
    g.lab("L_rok")
    g.stamp(6)
    e("s_nop 0")
    e("v_permlane32_swap_b32 v16, v17")
    e("v_permlane32_swap_b32 v18, v19")
    e("v_lshlrev_b32 v10, 16, v10")
    e("v_add_f32 v16, v16, v17")
    e("v_add_f32 v18, v18, v19")
    e("s_nop 1")
    e("v_permlane16_swap_b32 v16, v18")
    e("s_nop 0")
    e("v_add_f32 v16, v16, v18")
    e("s_nop 1")
    e("v_add_f32_dpp v16, v16, v16 row_ror:8 row_mask:0xf bank_mask:0xf")
    e("s_mov_b32 exec_lo, 0x00ff00ff")
    e("s_mov_b32 exec_hi, 0x00ff00ff")
    e("v_cvt_pk_bf16_f32 v16, v16, v16")
    e("v_and_b32 v16, 0xffff0000, v16")
    e("v_mul_f32 v16, v16, v11")
    e("v_cvt_pk_bf16_f32 v16, v16, v16")
    e("v_and_b32 v16, 0xffff0000, v16")
    e("v_fma_f32 v16, v10, 0, v16")
    e("v_add_f32 v16, v10, v16")
    e("v_cvt_pk_bf16_f32 v16, v16, v16")
    e(f"buffer_store_short v16, v8, s[60:63], s39 offen {a.ost}")
    g.stamp(7)
    if a.diag:
        g.lab("L_diag")
        e("s_waitcnt vmcnt(0) lgkmcnt(0)")
        g.stamp(9)
        e("s_mov_b64 exec, 1")
        e(f"s_add_u32 s56, s18, {W_DIAG}")
        e("s_addc_u32 s57, s19, 0")
        e("s_mov_b32 s58, 0x100000")
        e("s_mov_b32 s59, 0x20000")
        e("s_mul_i32 s30, s2, 5"); e("s_add_u32 s30, s30, s3"); e("s_lshl_b32 s30, s30, 6")
        e("v_mov_b32 v1, 0")
        for k in range(10):
            e(f"v_mov_b32 v2, s{70+2*k}")
            e(f"buffer_store_dword v2, v1, s[56:59], s30 offen offset:{4*k}")
    g.lab("L_end")
    e("s_endpgm")

    hdr = open("standalone__moe_arch_mod__sampling.s.ref").read().split("; Override launch")[0] if not a.nohdr else ""
    src = hdr + f"; @launch grid=(256,1,1) block=(320,1,1) lds={L_END+64}\n"
    src += f""".amdgcn_target "amdgcn-amd-amdhsa--gfx950"
.text
.globl {KN}
.p2align 8
.type {KN},@function
{KN}:
""" + "\n".join(x for x in g.L if x) + f"""
.section .rodata,"a"
.p2align 6
.amdhsa_kernel {KN}
  .amdhsa_next_free_vgpr 120
  .amdhsa_next_free_sgpr 102
  .amdhsa_accum_offset 120
  .amdhsa_group_segment_fixed_size 0
  .amdhsa_kernarg_size 64
  .amdhsa_user_sgpr_count 2
  .amdhsa_user_sgpr_kernarg_segment_ptr 1
  .amdhsa_system_sgpr_workgroup_id_x 1
  .amdhsa_float_denorm_mode_32 3
.end_amdhsa_kernel
"""
    return src

def parse(argv):
    p = argparse.ArgumentParser()
    p.add_argument("-o", default="/dev/stdout")
    p.add_argument("--diag", type=int, default=0)
    p.add_argument("--depth", type=int, default=5)
    p.add_argument("--nt", default="nt")
    p.add_argument("--st", default="sc1")
    p.add_argument("--ld", default="sc1")
    p.add_argument("--ost", default="")
    p.add_argument("--spin", type=int, default=20000)
    p.add_argument("--npoll", type=int, default=3)
    p.add_argument("--psleep", type=int, default=4)
    p.add_argument("--wsoff", type=int, default=0)
    p.add_argument("--nohdr", type=int, default=0)
    a = p.parse_args(argv)
    for k in ("nt", "st", "ld", "ost"):
        setattr(a, k, getattr(a, k).replace("+", " ").replace("none", ""))
    return a

if __name__ == "__main__":
    a = parse(sys.argv[1:])
    open(a.o, "w").write(gen(a))
```

```python
import sys, argparse

KN = "standalone__moe_arch_mod__sampling_kernel"
WB = 1024*3584*2
XBYTES = 8*32*1024*2

L_B = 0
L_C = 65536
L_X = 98304
XP = 1056
L_H = L_X + 8*XP
HP = 160
L_END = L_H + 8*HP

W_P = 0
W_Y = 56*8*2048
W_E = W_Y + 256*7168
W_END = W_E + 256
W_DIAG = 4 << 20

TAGM = 0x3ff

class G:
    def __init__(s, a):
        s.a = a; s.L = []; s.nst = 0; s.uid = 0
    def e(s, t): s.L.append("    " + t)
    def lab(s, t): s.L.append(t + ":")
    def c(s, t): s.L.append("    ; " + t)
    def u(s, p):
        s.uid += 1; return f"{p}_{s.uid}"
    def stamp(s, k, wait=True):
        if s.a.diag:
            s.e(f"s_memrealtime s[{70+2*k}:{71+2*k}]")
            if wait: s.e("s_waitcnt lgkmcnt(0)")

def gen(a):
    g = G(a); e = g.e; D = a.depth
    NT = a.nt
    ST = a.st
    LD = a.ld
    g.stamp(0, wait=False)
    if a.hold: e("s_memrealtime s[90:91]")
    if a.diag:
        for k in range(1, 10): e(f"s_mov_b32 s{70+2*k}, 0")
    e("s_load_dwordx16 s[4:19], s[0:1], 0")
    e("s_cmp_ge_u32 s2, 256")
    e("s_cbranch_scc1 L_end")
    e("v_lshrrev_b32 v1, 6, v0")
    e("v_and_b32 v0, 63, v0")
    e("s_and_b32 s20, s2, 7")
    e("v_readfirstlane_b32 s3, v1")
    e("s_lshr_b32 s21, s2, 3")
    e("s_mov_b32 s24, 0")
    e("s_mov_b32 s25, 0")
    e("s_and_b32 s23, s21, 3")
    e("s_cmp_eq_u32 s20, 4")
    e("s_cbranch_scc1 L_special")
    e("s_cmp_gt_u32 s20, 4")
    e("s_subb_u32 s26, s20, 0")
    e("s_lshl_b32 s26, s26, 3")
    e("s_lshr_b32 s27, s21, 2")
    e("s_cmp_lt_u32 s21, 12")
    e("s_cbranch_scc1 L_dec")
    e("s_sub_u32 s27, s27, 1")
    e("s_cmp_ge_u32 s21, 20")
    e("s_cbranch_scc1 L_dec")
    e("s_mov_b32 s27, 3")
    e("s_sub_u32 s23, s21, 12")
    e("s_mov_b32 s24, 1")
    e("s_branch L_dec")
    g.lab("L_special")
    e("s_lshr_b32 s26, s21, 2")
    e("s_lshl_b32 s26, s26, 3")
    e("s_mov_b32 s27, 7")
    e("s_cmp_ge_u32 s21, 28")
    e("s_cselect_b32 s25, 1, 0")
    g.lab("L_dec")
    e("s_add_u32 s22, s26, s27")
    e("s_cmp_eq_u32 s3, 4")
    e("s_cbranch_scc1 L_ctl")
    e("s_cmp_eq_u32 s25, 1")
    e("s_cbranch_scc1 L_end")
    e("v_bfe_u32 v1, v0, 1, 2")
    e("v_bfe_u32 v2, v0, 3, 1")
    e("v_lshl_add_u32 v1, v2, 3, v1")
    e("v_lshrrev_b32 v2, 4, v0")
    e("v_and_b32 v3, 1, v0")
    e("v_lshl_add_u32 v3, v2, 1, v3")
    e("v_lshlrev_b32 v3, 4, v3")
    e("v_mul_u32_u24 v4, 7168, v1")
    e("v_add_u32 v4, v4, v3")
    e("v_lshl_add_u32 v5, v1, 11, v3")
    e("s_and_b32 s28, s3, 1")
    e("s_lshl_b32 s28, s28, 4")
    e("s_lshr_b32 s29, s3, 1")
    e("s_lshl_b32 s29, s29, 2")
    e("s_add_u32 s28, s28, s29")
    e("s_cmp_eq_u32 s24, 1")
    e("s_cselect_b32 s30, 2, 1")
    e("s_cselect_b32 s31, 3, 1")
    e("s_cselect_b32 s32, 8, 9")
    e("s_lshr_b32 s33, s23, s30")
    e("s_and_b32 s34, s23, s31")
    e("s_lshl_b32 s35, s34, s32")
    e("s_add_u32 s36, s35, s28")
    e("s_mul_i32 s36, s36, 7168")
    e("s_lshl_b32 s37, s22, 7")
    e("s_add_u32 s36, s36, s37")
    e("s_lshl_b32 s37, s3, 10")
    e("s_mov_b32 m0, s37")
    e("s_lshr_b32 s38, s23, s24")
    e("s_lshl_b32 s38, s38, 2")
    e("s_add_u32 s38, s38, s3")
    e("s_lshl_b32 s39, s22, 17")
    e("s_lshl_b32 s40, s38, 7")
    e("s_add_u32 s39, s39, s40")
    e("s_and_b32 s41, s23, s24")
    e("s_waitcnt lgkmcnt(0)")
    g.stamp(1)
    e("s_cmp_eq_u32 s33, 1")
    e("s_cselect_b32 s44, s10, s8")
    e("s_cselect_b32 s45, s11, s9")
    e(f"s_mov_b32 s46, {WB}")
    e("s_mov_b32 s47, 0x20000")
    e("s_mov_b32 s48, s12")
    e("s_mov_b32 s49, s13")
    e(f"s_mov_b32 s50, {WB}")
    e("s_mov_b32 s51, 0x20000")
    e("s_cmp_eq_u32 s24, 1")
    e("s_cbranch_scc1 L_slow")

    def cload(j):
        rows = 32*(j >> 2) + (0, 16, 4, 20)[j & 3]
        e(f"s_add_u32 m0, s42, {j*1024}")
        e(f"s_add_u32 s43, s39, {rows*2048}")
        e(f"buffer_load_dwordx4 v5, s[48:51], s43 offen {NT} lds")

    def bphase(nb, d, tag):
        n1 = nb*3//4
        half = nb//2
        e(f"s_mov_b32 s43, {nb}")
        g.lab(f"L_bl{tag}")
        e(f"s_waitcnt vmcnt({d-1})")
        e(f"buffer_load_dwordx4 v4, s[44:47], s36 offen {NT} lds")
        e(f"s_add_u32 s36, s36, {32*7168}")
        e("s_add_u32 m0, m0, 4096")
        e("s_sub_u32 s43, s43, 1")
        e("s_cmp_lg_u32 s43, 0")
        e(f"s_cbranch_scc1 L_bl{tag}")
        e("s_lshl_b32 s42, s3, 13")
        e(f"s_add_u32 s42, s42, {L_C}")
        e("v_lshrrev_b32 v1, 5, v0")
        e("v_and_b32 v3, 31, v0")
        e("v_lshlrev_b32 v6, 3, v3")
        e("v_lshl_add_u32 v6, v1, 10, v6")
        e("v_add_u32 v7, s42, v6")
        e("s_lshl_b32 s43, s3, 8")
        e("v_add_u32 v6, s43, v6")
        e("v_and_b32 v8, 7, v0")
        e("v_bfe_u32 v9, v0, 3, 1")
        e(f"v_mul_u32_u24 v10, {XP}, v8")
        e("v_lshl_add_u32 v10, v2, 4, v10")
        e(f"v_mul_u32_u24 v11, {half*64}, v9")
        e("v_add_u32 v10, v10, v11")
        if nb == 8:
            e("s_and_b32 s43, s34, 1")
            e("s_lshl_b32 s43, s43, 9")
            e(f"s_add_u32 s43, s43, {L_X}")
            e("v_add_u32 v10, s43, v10")
        else:
            e(f"v_add_u32 v10, {L_X}, v10")
        nc_early = max(0, min(8, n1 - 1 + d + 1 - nb))
        skipc = g.u("L_noc")
        if nb == 8:
            e("s_cmp_eq_u32 s41, 1")
            e(f"s_cbranch_scc1 {skipc}a")
        for j in range(nc_early):
            e(f"s_waitcnt vmcnt({d-1})")
            cload(j)
        e(f"s_waitcnt vmcnt({nb - n1 + nc_early})")
        if nb == 8:
            e(f"s_branch {skipc}b")
            g.lab(f"{skipc}a")
            e(f"s_waitcnt vmcnt({nb - n1})")
            g.lab(f"{skipc}b")
        g.stamp(2)
        e("s_barrier")
        g.stamp(3)
        if nb == 8:
            e("s_cmp_eq_u32 s41, 1")
            e(f"s_cbranch_scc1 {skipc}c")
        for j in range(nc_early, 8):
            cload(j)
        if nb == 8:
            g.lab(f"{skipc}c")
        XF = 16
        WF = 48
        ops = []
        need = []
        e(f"ds_read_b32 v12, v13 offset:{L_END}") if False else None
        seq = []
        for f in range(half):
            seq.append(("x", f))
        order = []
        for k in range(n1):
            if k < half: order.append(f"ds_read_b128 v[{XF+4*k}:{XF+4*k+3}], v10 offset:{k*64}")
            order.append(f"ds_read_b64_tr_b16 v[{WF+4*k}:{WF+4*k+1}], v6 offset:{k*4096}")
            order.append(f"ds_read_b64_tr_b16 v[{WF+4*k+2}:{WF+4*k+3}], v6 offset:{k*4096+2048}")
            need.append(len(order))
        issued = 0
        def issue_upto(n):
            nonlocal issued
            while issued < min(n, len(order)):
                e(order[issued]); issued += 1
        def mfma(k):
            acc = 112 if k < half else 116
            xf = XF + 4*(k % half)
            cin = "0" if k in (0, half) else f"v[{acc}:{acc+3}]"
            e(f"v_mfma_f32_16x16x32_bf16 v[{acc}:{acc+3}], v[{WF+4*k}:{WF+4*k+3}], v[{xf}:{xf+3}], {cin}")
        for k in range(n1):
            issue_upto(need[k] + 12 - 3)
            e(f"s_waitcnt lgkmcnt({issued - need[k]})")
            mfma(k)
        if nb == 8:
            e("s_cmp_eq_u32 s41, 1")
            e(f"s_cbranch_scc1 {skipc}d")
        e("s_waitcnt vmcnt(8)")
        if nb == 8:
            e(f"s_branch {skipc}e")
            g.lab(f"{skipc}d")
            e("s_waitcnt vmcnt(0)")
            g.lab(f"{skipc}e")
        g.stamp(4)
        e("s_barrier")
        for k in range(n1, nb):
            e(f"ds_read_b64_tr_b16 v[{WF+4*k}:{WF+4*k+1}], v6 offset:{k*4096}")
            e(f"ds_read_b64_tr_b16 v[{WF+4*k+2}:{WF+4*k+3}], v6 offset:{k*4096+2048}")
        for k in range(n1, nb):
            e(f"s_waitcnt lgkmcnt({2*(nb-1-k)})")
            mfma(k)

    bphase(16, D, "n")
    e("s_branch L_pub")
    g.lab("L_slow")
    bphase(8, max(2, (D+1)//2), "s")
    g.lab("L_pub")
    e(f"v_mov_b32 v13, {L_END}")
    e("ds_read_b32 v12, v13")
    e("s_lshl_b32 s43, s22, 3")
    e("s_lshl_b32 s52, s33, 2")
    e("s_add_u32 s52, s52, s43")
    e("s_add_u32 s52, s52, s34")
    e("s_lshl_b32 s52, s52, 11")
    e("s_lshl_b32 s53, s3, 6")
    e("s_add_u32 s52, s52, s53")
    e(f"s_add_u32 s56, s18, {a.wsoff}")
    e("s_addc_u32 s57, s19, 0")
    e(f"s_mov_b32 s58, {W_END}")
    e("s_mov_b32 s59, 0x20000")
    e("v_lshlrev_b32 v14, 8, v8")
    e("v_lshl_add_u32 v14, v2, 4, v14")
    e(f"v_mov_b32 v15, {TAGM}")
    e("s_nop 1")
    for r in range(4):
        e(f"v_add_f32_dpp v{112+r}, v{116+r}, v{112+r} row_ror:8 row_mask:0xf bank_mask:0xf")
    e("s_waitcnt lgkmcnt(0)")
    for r in range(4):
        e(f"v_bfi_b32 v{112+r}, v15, v12, v{112+r}")
    e("s_mov_b32 exec_lo, 0x00ff00ff")
    e("s_mov_b32 exec_hi, 0x00ff00ff")
    e(f"buffer_store_dwordx4 v[112:115], v14, s[56:59], s52 offen {ST}")
    e("s_mov_b64 exec, -1")
    g.stamp(5)
    e("s_cmp_eq_u32 s41, 1")
    e("s_cbranch_scc1 L_cdone")
    e("s_lshl_b32 s52, s43, 11")
    e("s_lshl_b32 s53, s3, 9")
    e("s_add_u32 s52, s52, s53")
    e("s_add_u32 s53, s52, 8192")
    e("s_add_u32 s54, s52, 4096")
    e("s_add_u32 s55, s53, 4096")
    e("v_lshlrev_b32 v14, 3, v0")
    e(f"v_mul_u32_u24 v16, {HP}, v8")
    e("v_lshl_add_u32 v16, v2, 4, v16")
    e(f"v_add_u32 v16, {L_H}, v16")
    e("s_lshl_b32 s60, s3, 1")
    e("v_add_u32 v17, s60, v1")
    e(f"v_mul_u32_u24 v17, {HP}, v17")
    e("v_lshl_add_u32 v17, v3, 2, v17")
    e(f"v_add_u32 v17, {L_H}, v17")
    e("s_waitcnt vmcnt(1)")
    for ks in range(2):
        for tt in range(4):
            r = 48 + 16*ks + 4*tt
            e(f"ds_read_b64_tr_b16 v[{r}:{r+1}], v7 offset:{ks*4096+tt*256}")
            e(f"ds_read_b64_tr_b16 v[{r+2}:{r+3}], v7 offset:{ks*4096+tt*256+2048}")
    g.stamp(6)
    e(f"s_mov_b32 s61, {a.spin}")
    g.lab("L_g2")
    e(f"buffer_load_dwordx2 v[20:21], v14, s[56:59], s52 offen {LD}")
    e(f"buffer_load_dwordx2 v[22:23], v14, s[56:59], s52 offen offset:2048 {LD}")
    e(f"buffer_load_dwordx2 v[24:25], v14, s[56:59], s53 offen {LD}")
    e(f"buffer_load_dwordx2 v[26:27], v14, s[56:59], s53 offen offset:2048 {LD}")
    e("s_cmp_eq_u32 s24, 1")
    e("s_cbranch_scc0 L_g2n")
    e(f"buffer_load_dwordx2 v[28:29], v14, s[56:59], s54 offen {LD}")
    e(f"buffer_load_dwordx2 v[30:31], v14, s[56:59], s54 offen offset:2048 {LD}")
    e(f"buffer_load_dwordx2 v[32:33], v14, s[56:59], s55 offen {LD}")
    e(f"buffer_load_dwordx2 v[34:35], v14, s[56:59], s55 offen offset:2048 {LD}")
    e("s_waitcnt vmcnt(0)")
    e("v_xor_b32 v18, v28, v12")
    for r in range(29, 36):
        e(f"v_bitop3_b32 v18, v18, v{r}, v12 bitop3:0xf6")
    e("v_add_f32 v20, v20, v28") if False else None
    e("s_branch L_g2c")
    g.lab("L_g2n")
    e("v_mov_b32 v18, 0")
    for r in range(28, 36):
        e(f"v_mov_b32 v{r}, 0")
    e("s_waitcnt vmcnt(0)")
    g.lab("L_g2c")
    for r in range(20, 28):
        e(f"v_bitop3_b32 v18, v18, v{r}, v12 bitop3:0xf6")
    e("v_and_b32 v18, v15, v18")
    e("v_cmp_ne_u32 vcc, 0, v18")
    e("s_cbranch_vccz L_g2ok")
    e("s_sub_u32 s61, s61, 1")
    e("s_cmp_lg_u32 s61, 0")
    e("s_cbranch_scc1 L_g2")
    g.lab("L_g2ok")
    g.stamp(7)
    e("v_add_f32 v20, v20, v22"); e("v_add_f32 v21, v21, v23")
    e("v_add_f32 v24, v24, v26"); e("v_add_f32 v25, v25, v27")
    e("v_add_f32 v28, v28, v30"); e("v_add_f32 v29, v29, v31")
    e("v_add_f32 v32, v32, v34"); e("v_add_f32 v33, v33, v35")
    e("v_add_f32 v20, v20, v28"); e("v_add_f32 v21, v21, v29")
    e("v_add_f32 v24, v24, v32"); e("v_add_f32 v25, v25, v33")
    e("v_cvt_pk_bf16_f32 v22, v20, v21")
    e("v_cvt_pk_bf16_f32 v26, v24, v25")
    e("v_lshlrev_b32 v20, 16, v22")
    e("v_and_b32 v21, 0xffff0000, v22")
    e("v_mul_f32 v28, 0xbfb8aa3b, v20")
    e("v_mul_f32 v29, 0xbfb8aa3b, v21")
    e("v_exp_f32 v28, v28")
    e("v_exp_f32 v29, v29")
    e("v_lshlrev_b32 v24, 16, v26")
    e("v_add_f32 v28, 1.0, v28")
    e("v_add_f32 v29, 1.0, v29")
    e("v_rcp_f32 v28, v28")
    e("v_rcp_f32 v29, v29")
    e("v_and_b32 v25, 0xffff0000, v26")
    e("v_mul_f32 v20, v20, v28")
    e("v_mul_f32 v21, v21, v29")
    e("v_cvt_pk_bf16_f32 v22, v20, v21")
    e("v_lshlrev_b32 v20, 16, v22")
    e("v_and_b32 v21, 0xffff0000, v22")
    e("v_mul_f32 v20, v20, v24")
    e("v_mul_f32 v21, v21, v25")
    e("v_cvt_pk_bf16_f32 v22, v20, v21")
    e("ds_write_b32 v17, v22")
    e("s_waitcnt lgkmcnt(0)")
    e("s_barrier")
    e("ds_read_b128 v[20:23], v16")
    e("ds_read_b128 v[24:27], v16 offset:64")
    e("s_mov_b32 s60, 229376")
    e("v_mul_lo_u32 v14, v8, s60")
    e("v_lshl_add_u32 v14, v9, 6, v14")
    e("v_lshl_add_u32 v14, v2, 4, v14")
    e(f"s_mul_i32 s52, s38, {2*7168}")
    e("s_lshl_b32 s53, s22, 7")
    e("s_add_u32 s52, s52, s53")
    e(f"s_add_u32 s52, s52, {W_Y}")
    e("s_add_u32 s53, s52, 7168")
    e("v_cmp_eq_u32 vcc, 1, v9")
    e("s_waitcnt lgkmcnt(1)")
    for tt in range(4):
        e(f"v_mfma_f32_16x16x32_bf16 v[{80+4*tt}:{83+4*tt}], v[{48+4*tt}:{51+4*tt}], v[20:23], 0")
    e("s_waitcnt lgkmcnt(0)")
    for tt in range(4):
        e(f"v_mfma_f32_16x16x32_bf16 v[{80+4*tt}:{83+4*tt}], v[{64+4*tt}:{67+4*tt}], v[24:27], v[{80+4*tt}:{83+4*tt}]")
    e("s_nop 5")
    for r in range(4):
        e(f"v_cndmask_b32 v{80+r}, v{80+r}, v{84+r}, vcc")
    for r in range(4):
        e(f"v_bfi_b32 v{80+r}, v15, v12, v{80+r}")
    e(f"buffer_store_dwordx4 v[80:83], v14, s[56:59], s52 offen {ST}")
    for r in range(4):
        e(f"v_cndmask_b32 v{88+r}, v{88+r}, v{92+r}, vcc")
    for r in range(4):
        e(f"v_bfi_b32 v{88+r}, v15, v12, v{88+r}")
    e(f"buffer_store_dwordx4 v[88:91], v14, s[56:59], s53 offen {ST}")
    g.stamp(8)
    e("s_barrier")
    g.lab("L_cdone")
    if a.diag:
        e("s_branch L_diag")
    e("s_endpgm")

    g.lab("L_ctl")
    e("s_setprio 3")
    e("s_sub_u32 s26, s20, 1")
    e("s_lshl_b32 s27, s26, 5")
    e("s_add_u32 s27, s27, s21")
    e("v_lshlrev_b32 v1, 2, v0")
    e("v_and_b32 v2, 15, v0")
    e("v_lshrrev_b32 v3, 4, v0")
    e("v_lshlrev_b32 v4, 4, v2")
    e("v_lshl_add_u32 v5, v3, 11, v4")
    e("s_lshl_b32 s28, s27, 13")
    e("s_waitcnt lgkmcnt(0)")
    g.stamp(1)
    e("s_mov_b32 s44, s4"); e("s_mov_b32 s45, s5"); e(f"s_mov_b32 s46, {XBYTES}"); e("s_mov_b32 s47, 0x20000")
    e("s_mov_b32 s52, s16"); e("s_mov_b32 s53, s17"); e("s_mov_b32 s54, 256"); e("s_mov_b32 s55, 0x20000")
    e("s_cmp_lt_u32 s26, 2")
    e("s_cbranch_scc0 L_poll0")
    e("s_mov_b32 s48, s6"); e("s_mov_b32 s49, s7"); e("s_mov_b32 s50, 2048"); e("s_mov_b32 s51, 0x20000")
    for n in range(8):
        e(f"buffer_load_dwordx4 v[{16+4*n}:{19+4*n}], v5, s[44:47], s28 offen offset:{n*256}")
        e(f"buffer_load_dwordx4 v[{48+4*n}:{51+4*n}], v4, s[48:51], 0 offen offset:{n*256}")
    g.lab("L_poll0")
    e(f"s_add_u32 s56, s18, {a.wsoff}")
    e("s_addc_u32 s57, s19, 0")
    e(f"s_mov_b32 s58, {W_END}")
    e("s_mov_b32 s59, 0x20000")
    e("s_mov_b32 s60, s14"); e("s_mov_b32 s61, s15"); e(f"s_mov_b32 s62, {XBYTES}"); e("s_mov_b32 s63, 0x20000")
    e("s_cmp_lt_u32 s26, 2")
    e("s_cbranch_scc0 L_poll")
    e("s_mov_b32 s29, 0")
    e("s_cmp_eq_u32 s27, 0")
    e("s_cbranch_scc0 L_noep")
    e(f"s_mov_b32 s30, {W_E}")
    e(f"s_load_dword s29, s[56:57], s30 glc")
    e("s_waitcnt lgkmcnt(0)")
    e("s_add_u32 s29, s29, 1")
    e("v_mov_b32 v7, s29")
    e(f"s_and_b32 s29, s29, {TAGM}")
    e("s_lshl_b32 s29, s29, 1")
    g.lab("L_noep")
    e("s_and_b32 s30, s27, 7")
    e("s_lshl_b32 s30, s30, 2")
    e("s_sub_u32 s30, 31, s30")
    e("v_sub_u32 v6, s30, v3")
    e("v_lshlrev_b32 v6, 11, v6")
    e("s_or_b32 s29, s29, 1")
    e("v_or_b32 v6, s29, v6")
    for n in range(8):
        e(f"s_waitcnt vmcnt({14-2*n})")
        for r in range(4):
            src = "0" if n == 0 else f"v{8+r}"
            e(f"v_dot2_f32_bf16 v{8+r}, v{16+4*n+r}, v{48+4*n+r}, {src}")
    e("s_nop 2")
    e("v_add_f32 v8, v8, v9"); e("v_add_f32 v10, v10, v11")
    e("s_nop 0")
    e("v_add_f32 v8, v8, v10")
    for sh in (8, 4, 2, 1):
        e("s_nop 1")
        e(f"v_add_f32_dpp v8, v8, v8 row_ror:{sh} row_mask:0xf bank_mask:0xf")
    e("v_cvt_pk_bf16_f32 v9, v8, v8")
    e("v_cmp_u_f32 vcc, v8, v8")
    e("v_ashrrev_i32 v10, 31, v9")
    e("v_or_b32 v10, 0x80000000, v10")
    e("v_xor_b32 v9, v9, v10")
    e("v_cndmask_b32 v9, v9, 0, vcc")
    e("v_and_or_b32 v9, v9, s64, v6") if False else None
    e("v_and_b32 v9, 0xffff0000, v9")
    e("v_or_b32 v9, v9, v6")
    e("s_nop 0")
    e("v_readlane_b32 s30, v9, 0")
    e("v_readlane_b32 s31, v9, 16")
    e("v_readlane_b32 s32, v9, 32")
    e("v_readlane_b32 s33, v9, 48")
    e("s_max_u32 s30, s30, s31")
    e("s_max_u32 s32, s32, s33")
    e("s_max_u32 s30, s30, s32")
    e("s_lshl_b32 s31, s27, 2")
    e("v_mov_b32 v9, s30")
    e("s_mov_b64 exec, 1")
    e(f"buffer_store_dword v9, v1, s[52:55], s31 offen {ST}")
    e("s_cmp_eq_u32 s27, 0")
    e("s_cbranch_scc0 L_noep2")
    e(f"s_mov_b32 s30, {W_E}")
    e("buffer_store_dword v7, v1, s[56:59], s30 offen sc1")
    g.lab("L_noep2")
    e("s_mov_b64 exec, -1")
    g.stamp(2)
    g.lab("L_poll")
    e(f"s_mov_b32 s34, {a.spin}")
    NP = a.npoll
    for k in range(NP-1):
        e(f"buffer_load_dword v{80+k}, v1, s[52:55], 0 offen {LD}")
        e(f"s_sleep {a.psleep}")
    g.lab("L_pl")
    for k in range(NP):
        e(f"buffer_load_dword v{80+(k+NP-1)%NP}, v1, s[52:55], 0 offen {LD}")
        e(f"s_waitcnt vmcnt({NP-1})")
        e(f"v_cmp_eq_u32 vcc, 0, v{80+k}")
        e(f"v_mov_b32 v14, v{80+k}")
        e("s_cbranch_vccz L_pok")
        if NP > 1: e(f"s_sleep {a.psleep}")
    e("s_sub_u32 s34, s34, 1")
    e("s_cmp_lg_u32 s34, 0")
    e("s_cbranch_scc1 L_pl")
    g.lab("L_pok")
    g.stamp(3)
    e("v_readlane_b32 s35, v14, 0")
    e("s_nop 0")
    e("v_max_u32_dpp v14, v14, v14 quad_perm:[1,0,3,2] row_mask:0xf bank_mask:0xf")
    e("s_nop 1")
    e("v_max_u32_dpp v14, v14, v14 quad_perm:[2,3,0,1] row_mask:0xf bank_mask:0xf")
    e("s_nop 1")
    e("v_max_u32_dpp v14, v14, v14 row_half_mirror row_mask:0xf bank_mask:0xf")
    e("v_lshrrev_b32 v13, 3, v0")
    e("v_bfe_u32 v15, v14, 11, 5")
    e("v_lshl_add_u32 v13, v13, 5, 31")
    e("v_sub_u32 v13, v13, v15")
    e("v_lshlrev_b32 v15, 11, v13")
    e("s_bfe_u32 s35, s35, 0xa0001")
    e("s_and_b32 s36, s23, 1")
    e("s_bfe_u32 s37, s23, 0x10001")
    e("s_cmp_eq_u32 s24, 1")
    e("s_cselect_b32 s36, s37, s36")
    e("s_lshl_b32 s36, s36, 10")
    e("v_lshlrev_b32 v7, 4, v0")
    e("v_add_u32 v7, s36, v7")
    for b in range(8):
        e(f"v_readlane_b32 s{64+b if not a.diag else 92+b}, v15, {8*b}")
    e("s_cmp_eq_u32 s25, 1")
    e("s_cbranch_scc1 L_nox")
    e(f"s_mov_b32 m0, {L_X}")
    e("v_mov_b32 v12, s35")
    e(f"v_mov_b32 v11, {L_END}")
    e("ds_write_b32 v11, v12")
    for b in range(8):
        e(f"buffer_load_dwordx4 v7, s[44:47], s{64+b if not a.diag else 92+b} offen lds")
        if b < 7:
            e(f"s_add_u32 m0, m0, {XP}")
            e("s_nop 0")
    g.lab("L_nox")
    e("s_lshr_b32 s38, s2, 5")
    e("s_lshl_b32 s38, s38, 3")
    e("s_nop 0")
    e("v_readlane_b32 s39, v15, s38")
    e("v_readlane_b32 s40, v14, s38")
    e("s_and_b32 s41, s2, 31")
    e("s_lshl_b32 s41, s41, 6")
    e("s_add_u32 s39, s39, s41")
    e("v_and_b32 v8, 7, v0")
    e("v_lshlrev_b32 v8, 3, v8")
    e("v_bfe_u32 v9, v0, 4, 1")
    e("v_lshl_add_u32 v8, v9, 2, v8")
    e("v_lshrrev_b32 v9, 5, v0")
    e("v_lshl_add_u32 v8, v9, 1, v8")
    e("buffer_load_ushort v10, v8, s[44:47], s39 offen")
    e("s_cmp_eq_u32 s25, 1")
    e("s_cbranch_scc1 L_nobar")
    e("s_waitcnt vmcnt(1) lgkmcnt(0)")
    g.stamp(4)
    e("s_barrier")
    g.lab("L_nobar")
    e("s_cmp_lt_u32 s26, 2")
    e("s_cbranch_scc0 L_nocopy")
    e("s_and_b32 s30, s27, 0x38")
    e("s_nop 0")
    e("v_readlane_b32 s31, v13, s30")
    e("s_lshl_b32 s30, s27, 2")
    e("v_add_u32 v9, s30, v3")
    e("s_mov_b32 s32, 0x7f807f80")
    e("s_mov_b32 s33, 0x00400040")
    e("v_cmp_ne_u32 vcc, s31, v9")
    e("s_and_saveexec_b64 s[42:43], vcc")
    for n in range(8):
        for r in range(4):
            v = 16+4*n+r
            e(f"v_and_b32 v48, s32, v{v}")
            e("v_add_u32 v48, 0x00800080, v48")
            e("v_lshrrev_b32 v48, 9, v48")
            e(f"v_and_or_b32 v{v}, v48, s33, v{v}")
        e(f"buffer_store_dwordx4 v[{16+4*n}:{19+4*n}], v5, s[60:63], s28 offen offset:{n*256} {a.ost}")
    e("s_mov_b64 exec, -1")
    g.lab("L_nocopy")
    e("v_mov_b32 v11, s40")
    e("v_ashrrev_i32 v12, 31, v11")
    e("v_not_b32 v12, v12")
    e("v_or_b32 v12, 0x80000000, v12")
    e("v_xor_b32 v11, v11, v12")
    e("v_and_b32 v11, 0xffff0000, v11")
    e("v_mul_f32 v11, 0xbfb8aa3b, v11")
    e("v_exp_f32 v11, v11")
    e("v_mov_b32 v12, s35")
    e("v_add_f32 v11, 1.0, v11")
    e("v_rcp_f32 v11, v11")
    e(f"s_mul_i32 s30, s2, 7168")
    e("v_cvt_pk_bf16_f32 v11, v11, v11")
    e(f"s_add_u32 s30, s30, {W_Y}")
    e("v_and_b32 v11, 0xffff0000, v11")
    e("s_add_u32 s31, s30, 4096")
    e("v_lshlrev_b32 v7, 4, v0")
    e("s_cmp_eq_u32 s25, 1")
    e("s_cbranch_scc1 L_red")
    e("s_barrier")
    e("s_and_b32 s41, s23, s24")
    e("s_cmp_eq_u32 s41, 1")
    e("s_cbranch_scc1 L_red")
    e("s_barrier")
    e("s_barrier")
    g.lab("L_red")
    g.stamp(5)
    e(f"s_mov_b32 s34, {a.spin}")
    g.lab("L_rl")
    for n in range(7):
        so = "s30" if n < 4 else "s31"
        e(f"buffer_load_dwordx4 v[{16+4*n}:{19+4*n}], v7, s[56:59], {so} offen offset:{(n%4)*1024} {LD}")
    for n in range(7):
        e(f"s_waitcnt vmcnt({6-n})")
        for r in range(4):
            v = 16+4*n+r
            if n == 0 and r == 0: e(f"v_xor_b32 v9, v{v}, v12")
            else: e(f"v_bitop3_b32 v9, v9, v{v}, v12 bitop3:0xf6")
        if n:
            e(f"v_pk_add_f32 v[16:17], v[16:17], v[{16+4*n}:{17+4*n}]")
            e(f"v_pk_add_f32 v[18:19], v[18:19], v[{18+4*n}:{19+4*n}]")
    e(f"v_and_b32 v9, {TAGM}, v9")
    e("v_cmp_ne_u32 vcc, 0, v9")
    e("s_cbranch_vccz L_rok")
    e("s_sub_u32 s34, s34, 1")
    e("s_cmp_lg_u32 s34, 0")
    e("s_cbranch_scc1 L_rl")
    g.lab("L_rok")
    g.stamp(6)
    e("s_nop 0")
    e("v_permlane32_swap_b32 v16, v17")
    e("v_permlane32_swap_b32 v18, v19")
    e("v_lshlrev_b32 v10, 16, v10")
    e("v_add_f32 v16, v16, v17")
    e("v_add_f32 v18, v18, v19")
    e("s_nop 1")
    e("v_permlane16_swap_b32 v16, v18")
    e("s_nop 0")
    e("v_add_f32 v16, v16, v18")
    e("s_nop 1")
    e("v_add_f32_dpp v16, v16, v16 row_ror:8 row_mask:0xf bank_mask:0xf")
    e("s_mov_b32 exec_lo, 0x00ff00ff")
    e("s_mov_b32 exec_hi, 0x00ff00ff")
    e("v_cvt_pk_bf16_f32 v16, v16, v16")
    e("v_and_b32 v16, 0xffff0000, v16")
    e("v_mul_f32 v16, v16, v11")
    e("v_cvt_pk_bf16_f32 v16, v16, v16")
    e("v_and_b32 v16, 0xffff0000, v16")
    e("v_fma_f32 v16, v10, 0, v16")
    e("v_add_f32 v16, v10, v16")
    e("v_cvt_pk_bf16_f32 v16, v16, v16")
    e(f"buffer_store_short v16, v8, s[60:63], s39 offen {a.ost}")
    g.stamp(7)
    if a.hold:
        e("s_cmp_eq_u32 s2, 1")
        e("s_cbranch_scc0 L_end")
        g.lab("L_hold")
        e("s_memrealtime s[92:93]")
        e("s_waitcnt lgkmcnt(0)")
        e("s_sub_u32 s92, s92, s90")
        e(f"s_cmp_lt_u32 s92, {a.hold}")
        e("s_cbranch_scc1 L_hold")
    if a.diag:
        g.lab("L_diag")
        e("s_waitcnt vmcnt(0) lgkmcnt(0)")
        g.stamp(9)
        e("s_mov_b64 exec, 1")
        e(f"s_add_u32 s56, s18, {W_DIAG}")
        e("s_addc_u32 s57, s19, 0")
        e("s_mov_b32 s58, 0x100000")
        e("s_mov_b32 s59, 0x20000")
        e("s_mul_i32 s30, s2, 5"); e("s_add_u32 s30, s30, s3"); e("s_lshl_b32 s30, s30, 6")
        e("v_mov_b32 v1, 0")
        for k in range(10):
            e(f"v_mov_b32 v2, s{70+2*k}")
            e(f"buffer_store_dword v2, v1, s[56:59], s30 offen offset:{4*k}")
    g.lab("L_end")
    e("s_endpgm")

    hdr = open("standalone__moe_arch_mod__sampling.s.ref").read().split("; Override launch")[0] if not a.nohdr else ""
    src = hdr + f"; @launch grid=(256,1,1) block=(320,1,1) lds={L_END+64}\n"
    src += f""".amdgcn_target "amdgcn-amd-amdhsa--gfx950"
.text
.globl {KN}
.p2align 8
.type {KN},@function
{KN}:
""" + "\n".join(x for x in g.L if x) + f"""
.section .rodata,"a"
.p2align 6
.amdhsa_kernel {KN}
  .amdhsa_next_free_vgpr 120
  .amdhsa_next_free_sgpr 102
  .amdhsa_accum_offset 120
  .amdhsa_group_segment_fixed_size 0
  .amdhsa_kernarg_size 64
  .amdhsa_user_sgpr_count 2
  .amdhsa_user_sgpr_kernarg_segment_ptr 1
  .amdhsa_system_sgpr_workgroup_id_x 1
  .amdhsa_float_denorm_mode_32 3
.end_amdhsa_kernel
"""
    return src

def parse(argv):
    p = argparse.ArgumentParser()
    p.add_argument("-o", default="/dev/stdout")
    p.add_argument("--diag", type=int, default=0)
    p.add_argument("--depth", type=int, default=5)
    p.add_argument("--nt", default="nt")
    p.add_argument("--st", default="sc1")
    p.add_argument("--ld", default="sc1")
    p.add_argument("--ost", default="")
    p.add_argument("--spin", type=int, default=20000)
    p.add_argument("--npoll", type=int, default=3)
    p.add_argument("--psleep", type=int, default=4)
    p.add_argument("--wsoff", type=int, default=0)
    p.add_argument("--hold", type=int, default=0)
    p.add_argument("--nohdr", type=int, default=0)
    a = p.parse_args(argv)
    for k in ("nt", "st", "ld", "ost"):
        setattr(a, k, getattr(a, k).replace("+", " ").replace("none", ""))
    return a

if __name__ == "__main__":
    a = parse(sys.argv[1:])
    open(a.o, "w").write(gen(a))
```

```python
import sys, argparse

KN = "standalone__moe_arch_mod__sampling_kernel"
WB = 1024*3584*2
XBYTES = 8*32*1024*2

L_B = 0
L_C = 65536
L_X = 98304
XP = 1056
L_H = L_X + 8*XP
HP = 160
L_END = L_H + 8*HP

W_P = 0
W_Y = 56*8*2048
W_R = W_Y + 256*7168
W_M = W_R + 64*128
W_E = W_M + 256*128
W_END = W_E + 256
W_DIAG = 4 << 20

TAGM = 0x3ff

class G:
    def __init__(s, a):
        s.a = a; s.L = []; s.nst = 0; s.uid = 0
    def e(s, t): s.L.append("    " + t)
    def lab(s, t): s.L.append(t + ":")
    def c(s, t): s.L.append("    ; " + t)
    def u(s, p):
        s.uid += 1; return f"{p}_{s.uid}"
    def stamp(s, k, wait=True):
        if s.a.diag:
            if not wait:
                s.e("s_memrealtime s[90:91]"); return
            s.e("s_memrealtime s[68:69]")
            s.e("s_waitcnt lgkmcnt(0)")
            s.e(f"s_mov_b32 s{70+k}, s68")

def gen(a):
    g = G(a); e = g.e; D = a.depth
    NT = a.nt
    ST = a.st
    LD = a.ld
    g.stamp(0, wait=False)
    if a.hold and not a.diag: e("s_memrealtime s[90:91]")
    if a.diag:
        for k in range(1, 16): e(f"s_mov_b32 s{70+k}, 0")
    e("s_load_dwordx16 s[4:19], s[0:1], 0")
    e("s_cmp_ge_u32 s2, 256")
    e("s_cbranch_scc1 L_end")
    e("v_lshrrev_b32 v1, 6, v0")
    e("v_and_b32 v0, 63, v0")
    e("s_and_b32 s20, s2, 7")
    e("v_readfirstlane_b32 s3, v1")
    e("s_lshr_b32 s21, s2, 3")
    e("s_mov_b32 s24, 0")
    e("s_mov_b32 s25, 0")
    e("s_and_b32 s23, s21, 3")
    e(f"s_cmp_eq_u32 s20, {a.special}")
    e("s_cbranch_scc1 L_special")
    e(f"s_cmp_gt_u32 s20, {a.special}")
    e("s_subb_u32 s26, s20, 0")
    e("s_lshl_b32 s26, s26, 3")
    e("s_lshr_b32 s27, s21, 2")
    e("s_cmp_lt_u32 s21, 12")
    e("s_cbranch_scc1 L_dec")
    e("s_sub_u32 s27, s27, 1")
    e("s_cmp_ge_u32 s21, 20")
    e("s_cbranch_scc1 L_dec")
    e("s_mov_b32 s27, 3")
    e("s_sub_u32 s23, s21, 12")
    e("s_mov_b32 s24, 1")
    e("s_branch L_dec")
    g.lab("L_special")
    e("s_lshr_b32 s26, s21, 2")
    e("s_lshl_b32 s26, s26, 3")
    e("s_mov_b32 s27, 7")
    e("s_cmp_ge_u32 s21, 28")
    e("s_cselect_b32 s25, 1, 0")
    g.lab("L_dec")
    e("s_add_u32 s22, s26, s27")
    e("s_cmp_eq_u32 s3, 4")
    e("s_cbranch_scc1 L_ctl")
    e("s_cmp_eq_u32 s25, 1")
    e("s_cbranch_scc1 L_end")
    e("v_bfe_u32 v1, v0, 1, 2")
    e("v_bfe_u32 v2, v0, 3, 1")
    e("v_lshl_add_u32 v1, v2, 3, v1")
    e("v_lshrrev_b32 v2, 4, v0")
    e("v_and_b32 v3, 1, v0")
    e("v_lshl_add_u32 v3, v2, 1, v3")
    e("v_lshlrev_b32 v3, 4, v3")
    e("v_mul_u32_u24 v4, 7168, v1")
    e("v_add_u32 v4, v4, v3")
    e("v_lshl_add_u32 v5, v1, 11, v3")
    e("s_and_b32 s28, s3, 1")
    e("s_lshl_b32 s28, s28, 4")
    e("s_lshr_b32 s29, s3, 1")
    e("s_lshl_b32 s29, s29, 2")
    e("s_add_u32 s28, s28, s29")
    e("s_cmp_eq_u32 s24, 1")
    e("s_cselect_b32 s30, 2, 1")
    e("s_cselect_b32 s31, 3, 1")
    e("s_cselect_b32 s32, 8, 9")
    e("s_lshr_b32 s33, s23, s30")
    e("s_and_b32 s34, s23, s31")
    e("s_lshl_b32 s35, s34, s32")
    e("s_add_u32 s36, s35, s28")
    e("s_mul_i32 s36, s36, 7168")
    e("s_lshl_b32 s37, s22, 7")
    e("s_add_u32 s36, s36, s37")
    e("s_lshl_b32 s37, s3, 10")
    e("s_mov_b32 m0, s37")
    e("s_lshr_b32 s38, s23, s24")
    e("s_lshl_b32 s38, s38, 2")
    e("s_add_u32 s38, s38, s3")
    e("s_lshl_b32 s39, s22, 17")
    e("s_lshl_b32 s40, s38, 7")
    e("s_add_u32 s39, s39, s40")
    e("s_and_b32 s41, s23, s24")
    e("s_waitcnt lgkmcnt(0)")
    g.stamp(1)
    e("s_cmp_eq_u32 s33, 1")
    e("s_cselect_b32 s44, s10, s8")
    e("s_cselect_b32 s45, s11, s9")
    e(f"s_mov_b32 s46, {WB}")
    e("s_mov_b32 s47, 0x20000")
    e("s_mov_b32 s48, s12")
    e("s_mov_b32 s49, s13")
    e(f"s_mov_b32 s50, {WB}")
    e("s_mov_b32 s51, 0x20000")
    if a.rbar:
        e("s_sub_u32 s26, s20, 1")
        e("s_cmp_lt_u32 s26, 2")
        e("s_cbranch_scc0 L_norb")
        e("s_barrier")
        g.lab("L_norb")
    e("s_cmp_eq_u32 s24, 1")
    e("s_cbranch_scc1 L_slow")

    def cload(j):
        rows = 32*(j >> 2) + (0, 16, 4, 20)[j & 3]
        e(f"s_add_u32 m0, s42, {j*1024}")
        e(f"s_add_u32 s43, s39, {rows*2048}")
        e(f"buffer_load_dwordx4 v5, s[48:51], s43 offen {NT} lds")

    def bphase(nb, d, tag):
        n1 = nb*3//4
        half = nb//2
        e(f"s_mov_b32 s43, {nb}")
        g.lab(f"L_bl{tag}")
        e(f"s_waitcnt vmcnt({d-1})")
        e(f"buffer_load_dwordx4 v4, s[44:47], s36 offen {NT} lds")
        e(f"s_add_u32 s36, s36, {32*7168}")
        e("s_add_u32 m0, m0, 4096")
        e("s_sub_u32 s43, s43, 1")
        e("s_cmp_lg_u32 s43, 0")
        e(f"s_cbranch_scc1 L_bl{tag}")
        e("s_lshl_b32 s42, s3, 13")
        e(f"s_add_u32 s42, s42, {L_C}")
        e("v_lshrrev_b32 v1, 5, v0")
        e("v_and_b32 v3, 31, v0")
        e("v_lshlrev_b32 v6, 3, v3")
        e("v_lshl_add_u32 v6, v1, 10, v6")
        e("v_add_u32 v7, s42, v6")
        e("s_lshl_b32 s43, s3, 8")
        e("v_add_u32 v6, s43, v6")
        e("v_and_b32 v8, 7, v0")
        e("v_bfe_u32 v9, v0, 3, 1")
        e(f"v_mul_u32_u24 v10, {XP}, v8")
        e("v_lshl_add_u32 v10, v2, 4, v10")
        e(f"v_mul_u32_u24 v11, {half*64}, v9")
        e("v_add_u32 v10, v10, v11")
        if nb == 8:
            e("s_and_b32 s43, s34, 1")
            e("s_lshl_b32 s43, s43, 9")
            e(f"s_add_u32 s43, s43, {L_X}")
            e("v_add_u32 v10, s43, v10")
        else:
            e(f"v_add_u32 v10, {L_X}, v10")
        nc_early = max(0, min(8, n1 - 1 + d + 1 - nb))
        skipc = g.u("L_noc")
        if nb == 8:
            e("s_cmp_eq_u32 s41, 1")
            e(f"s_cbranch_scc1 {skipc}a")
        for j in range(nc_early):
            e(f"s_waitcnt vmcnt({d-1})")
            cload(j)
        e(f"s_waitcnt vmcnt({nb - n1 + nc_early})")
        if nb == 8:
            e(f"s_branch {skipc}b")
            g.lab(f"{skipc}a")
            e(f"s_waitcnt vmcnt({nb - n1})")
            g.lab(f"{skipc}b")
        g.stamp(2)
        e("s_barrier")
        g.stamp(3)
        if nb == 8:
            e("s_cmp_eq_u32 s41, 1")
            e(f"s_cbranch_scc1 {skipc}c")
        for j in range(nc_early, 8):
            cload(j)
        if nb == 8:
            g.lab(f"{skipc}c")
        XF = 16
        WF = 48
        ops = []
        need = []
        e(f"ds_read_b32 v12, v13 offset:{L_END}") if False else None
        seq = []
        for f in range(half):
            seq.append(("x", f))
        order = []
        for k in range(n1):
            if k < half: order.append(f"ds_read_b128 v[{XF+4*k}:{XF+4*k+3}], v10 offset:{k*64}")
            order.append(f"ds_read_b64_tr_b16 v[{WF+4*k}:{WF+4*k+1}], v6 offset:{k*4096}")
            order.append(f"ds_read_b64_tr_b16 v[{WF+4*k+2}:{WF+4*k+3}], v6 offset:{k*4096+2048}")
            need.append(len(order))
        issued = 0
        def issue_upto(n):
            nonlocal issued
            while issued < min(n, len(order)):
                e(order[issued]); issued += 1
        def mfma(k):
            acc = 112 if k < half else 116
            xf = XF + 4*(k % half)
            cin = "0" if k in (0, half) else f"v[{acc}:{acc+3}]"
            e(f"v_mfma_f32_16x16x32_bf16 v[{acc}:{acc+3}], v[{WF+4*k}:{WF+4*k+3}], v[{xf}:{xf+3}], {cin}")
        for k in range(n1):
            issue_upto(need[k] + 12 - 3)
            e(f"s_waitcnt lgkmcnt({issued - need[k]})")
            mfma(k)
        if nb == 8:
            e("s_cmp_eq_u32 s41, 1")
            e(f"s_cbranch_scc1 {skipc}d")
        e("s_waitcnt vmcnt(8)")
        if nb == 8:
            e(f"s_branch {skipc}e")
            g.lab(f"{skipc}d")
            e("s_waitcnt vmcnt(0)")
            g.lab(f"{skipc}e")
        g.stamp(4)
        e("s_barrier")
        for k in range(n1, nb):
            e(f"ds_read_b64_tr_b16 v[{WF+4*k}:{WF+4*k+1}], v6 offset:{k*4096}")
            e(f"ds_read_b64_tr_b16 v[{WF+4*k+2}:{WF+4*k+3}], v6 offset:{k*4096+2048}")
        for k in range(n1, nb):
            e(f"s_waitcnt lgkmcnt({2*(nb-1-k)})")
            mfma(k)

    bphase(16, D, "n")
    e("s_branch L_pub")
    g.lab("L_slow")
    bphase(8, a.sdepth or max(2, (D+1)//2), "s")
    g.lab("L_pub")
    e(f"v_mov_b32 v13, {L_END}")
    e("ds_read_b32 v12, v13")
    e("s_lshl_b32 s43, s22, 3")
    e("s_lshl_b32 s52, s33, 2")
    e("s_add_u32 s52, s52, s43")
    e("s_add_u32 s52, s52, s34")
    e("s_lshl_b32 s52, s52, 11")
    e("s_lshl_b32 s53, s3, 6")
    e("s_add_u32 s52, s52, s53")
    e(f"s_add_u32 s56, s18, {a.wsoff}")
    e("s_addc_u32 s57, s19, 0")
    e(f"s_mov_b32 s58, {W_END}")
    e("s_mov_b32 s59, 0x20000")
    e("v_lshlrev_b32 v14, 8, v8")
    e("v_lshl_add_u32 v14, v2, 4, v14")
    e(f"v_mov_b32 v15, {TAGM}")
    e("s_nop 1")
    for r in range(4):
        e(f"v_add_f32_dpp v{112+r}, v{116+r}, v{112+r} row_ror:8 row_mask:0xf bank_mask:0xf")
    e("s_waitcnt lgkmcnt(0)")
    for r in range(4):
        e(f"v_bfi_b32 v{112+r}, v15, v12, v{112+r}")
    e("s_mov_b32 exec_lo, 0x00ff00ff")
    e("s_mov_b32 exec_hi, 0x00ff00ff")
    e(f"buffer_store_dwordx4 v[112:115], v14, s[56:59], s52 offen {ST}")
    e("s_mov_b64 exec, -1")
    g.stamp(5)
    e("s_cmp_eq_u32 s41, 1")
    e("s_cbranch_scc1 L_cdone")
    e("s_lshl_b32 s52, s43, 11")
    e("s_lshl_b32 s53, s3, 9")
    e("s_add_u32 s52, s52, s53")
    e("s_add_u32 s53, s52, 8192")
    e("s_add_u32 s54, s52, 4096")
    e("s_add_u32 s55, s53, 4096")
    e("v_lshlrev_b32 v14, 3, v0")
    e(f"v_mul_u32_u24 v16, {HP}, v8")
    e("v_lshl_add_u32 v16, v2, 4, v16")
    e(f"v_add_u32 v16, {L_H}, v16")
    e("s_lshl_b32 s60, s3, 1")
    e("v_add_u32 v17, s60, v1")
    e(f"v_mul_u32_u24 v17, {HP}, v17")
    e("v_lshl_add_u32 v17, v3, 2, v17")
    e(f"v_add_u32 v17, {L_H}, v17")
    e("s_waitcnt vmcnt(1)")
    for ks in range(2):
        for tt in range(4):
            r = 48 + 16*ks + 4*tt
            e(f"ds_read_b64_tr_b16 v[{r}:{r+1}], v7 offset:{ks*4096+tt*256}")
            e(f"ds_read_b64_tr_b16 v[{r+2}:{r+3}], v7 offset:{ks*4096+tt*256+2048}")
    g.stamp(6)
    e(f"s_mov_b32 s61, {a.spin}")
    g.lab("L_g2")
    e(f"buffer_load_dwordx2 v[20:21], v14, s[56:59], s52 offen {LD}")
    e(f"buffer_load_dwordx2 v[22:23], v14, s[56:59], s52 offen offset:2048 {LD}")
    e(f"buffer_load_dwordx2 v[24:25], v14, s[56:59], s53 offen {LD}")
    e(f"buffer_load_dwordx2 v[26:27], v14, s[56:59], s53 offen offset:2048 {LD}")
    e("s_cmp_eq_u32 s24, 1")
    e("s_cbranch_scc0 L_g2n")
    e(f"buffer_load_dwordx2 v[28:29], v14, s[56:59], s54 offen {LD}")
    e(f"buffer_load_dwordx2 v[30:31], v14, s[56:59], s54 offen offset:2048 {LD}")
    e(f"buffer_load_dwordx2 v[32:33], v14, s[56:59], s55 offen {LD}")
    e(f"buffer_load_dwordx2 v[34:35], v14, s[56:59], s55 offen offset:2048 {LD}")
    e("s_waitcnt vmcnt(0)")
    e("v_xor_b32 v18, v28, v12")
    for r in range(29, 36):
        e(f"v_bitop3_b32 v18, v18, v{r}, v12 bitop3:0xf6")
    e("v_add_f32 v20, v20, v28") if False else None
    e("s_branch L_g2c")
    g.lab("L_g2n")
    e("v_mov_b32 v18, 0")
    for r in range(28, 36):
        e(f"v_mov_b32 v{r}, 0")
    e("s_waitcnt vmcnt(0)")
    g.lab("L_g2c")
    for r in range(20, 28):
        e(f"v_bitop3_b32 v18, v18, v{r}, v12 bitop3:0xf6")
    e("v_and_b32 v18, v15, v18")
    e("v_cmp_ne_u32 vcc, 0, v18")
    e("s_cbranch_vccz L_g2ok")
    e("s_sub_u32 s61, s61, 1")
    e("s_cmp_lg_u32 s61, 0")
    e("s_cbranch_scc1 L_g2")
    g.lab("L_g2ok")
    g.stamp(7)
    e("v_add_f32 v20, v20, v22"); e("v_add_f32 v21, v21, v23")
    e("v_add_f32 v24, v24, v26"); e("v_add_f32 v25, v25, v27")
    e("v_add_f32 v28, v28, v30"); e("v_add_f32 v29, v29, v31")
    e("v_add_f32 v32, v32, v34"); e("v_add_f32 v33, v33, v35")
    e("v_add_f32 v20, v20, v28"); e("v_add_f32 v21, v21, v29")
    e("v_add_f32 v24, v24, v32"); e("v_add_f32 v25, v25, v33")
    e("v_cvt_pk_bf16_f32 v22, v20, v21")
    e("v_cvt_pk_bf16_f32 v26, v24, v25")
    e("v_lshlrev_b32 v20, 16, v22")
    e("v_and_b32 v21, 0xffff0000, v22")
    e("v_mul_f32 v28, 0xbfb8aa3b, v20")
    e("v_mul_f32 v29, 0xbfb8aa3b, v21")
    e("v_exp_f32 v28, v28")
    e("v_exp_f32 v29, v29")
    e("v_lshlrev_b32 v24, 16, v26")
    e("v_add_f32 v28, 1.0, v28")
    e("v_add_f32 v29, 1.0, v29")
    e("v_rcp_f32 v28, v28")
    e("v_rcp_f32 v29, v29")
    e("v_and_b32 v25, 0xffff0000, v26")
    e("v_mul_f32 v20, v20, v28")
    e("v_mul_f32 v21, v21, v29")
    e("v_cvt_pk_bf16_f32 v22, v20, v21")
    e("v_lshlrev_b32 v20, 16, v22")
    e("v_and_b32 v21, 0xffff0000, v22")
    e("v_mul_f32 v20, v20, v24")
    e("v_mul_f32 v21, v21, v25")
    e("v_cvt_pk_bf16_f32 v22, v20, v21")
    e("ds_write_b32 v17, v22")
    e("s_waitcnt lgkmcnt(0)")
    e("s_barrier")
    e("ds_read_b128 v[20:23], v16")
    e("ds_read_b128 v[24:27], v16 offset:64")
    e("s_mov_b32 s60, 229376")
    e("v_mul_lo_u32 v14, v8, s60")
    e("v_lshl_add_u32 v14, v9, 6, v14")
    e("v_lshl_add_u32 v14, v2, 4, v14")
    e(f"s_mul_i32 s52, s38, {2*7168}")
    e("s_lshl_b32 s53, s22, 7")
    e("s_add_u32 s52, s52, s53")
    e(f"s_add_u32 s52, s52, {W_Y}")
    e("s_add_u32 s53, s52, 7168")
    e("v_cmp_eq_u32 vcc, 1, v9")
    e("s_waitcnt lgkmcnt(1)")
    for tt in range(4):
        e(f"v_mfma_f32_16x16x32_bf16 v[{80+4*tt}:{83+4*tt}], v[{48+4*tt}:{51+4*tt}], v[20:23], 0")
    e("s_waitcnt lgkmcnt(0)")
    for tt in range(4):
        e(f"v_mfma_f32_16x16x32_bf16 v[{80+4*tt}:{83+4*tt}], v[{64+4*tt}:{67+4*tt}], v[24:27], v[{80+4*tt}:{83+4*tt}]")
    e("s_nop 5")
    for r in range(4):
        e(f"v_cndmask_b32 v{80+r}, v{80+r}, v{84+r}, vcc")
    for r in range(4):
        e(f"v_bfi_b32 v{80+r}, v15, v12, v{80+r}")
    e(f"buffer_store_dwordx4 v[80:83], v14, s[56:59], s52 offen {ST}")
    for r in range(4):
        e(f"v_cndmask_b32 v{88+r}, v{88+r}, v{92+r}, vcc")
    for r in range(4):
        e(f"v_bfi_b32 v{88+r}, v15, v12, v{88+r}")
    e(f"buffer_store_dwordx4 v[88:91], v14, s[56:59], s53 offen {ST}")
    g.stamp(8)
    e("s_barrier")
    g.lab("L_cdone")
    if a.diag:
        e("s_branch L_diag")
    e("s_endpgm")

    g.lab("L_ctl")
    e("s_setprio 3")
    e("s_sub_u32 s26, s20, 1")
    e("s_lshl_b32 s27, s26, 5")
    e("s_add_u32 s27, s27, s21")
    e("v_and_b32 v2, 15, v0")
    e("v_lshrrev_b32 v3, 4, v0")
    e("v_lshlrev_b32 v4, 4, v2")
    e("v_lshl_add_u32 v5, v3, 11, v4")
    e("s_lshl_b32 s28, s27, 13")
    e("v_mov_b32 v1, 0")
    e(f"s_mov_b32 s30, {W_E}")
    e("s_waitcnt lgkmcnt(0)")
    g.stamp(1)
    e(f"s_add_u32 s56, s18, {a.wsoff}")
    e("s_addc_u32 s57, s19, 0")
    e(f"s_mov_b32 s58, {W_END}")
    e("s_mov_b32 s59, 0x20000")
    e("s_mov_b32 s44, s4"); e("s_mov_b32 s45, s5"); e(f"s_mov_b32 s46, {XBYTES}"); e("s_mov_b32 s47, 0x20000")
    e("buffer_load_dword v6, v1, s[56:59], s30 offen sc1")
    e("s_cmp_lt_u32 s26, 2")
    e("s_cbranch_scc0 L_norl")
    e("s_mov_b32 s48, s6"); e("s_mov_b32 s49, s7"); e("s_mov_b32 s50, 2048"); e("s_mov_b32 s51, 0x20000")
    for n in range(8):
        e(f"buffer_load_dwordx4 v[{16+4*n}:{19+4*n}], v5, s[44:47], s28 offen offset:{n*256} {a.xnt}")
        e(f"buffer_load_dwordx4 v[{48+4*n}:{51+4*n}], v4, s[48:51], 0 offen offset:{n*256} {a.wrnt}")
    if a.rbar: e("s_barrier")
    g.lab("L_norl")
    e("s_mov_b32 s60, s14"); e("s_mov_b32 s61, s15"); e(f"s_mov_b32 s62, {XBYTES}"); e("s_mov_b32 s63, 0x20000")
    e("s_and_b32 s36, s23, 1")
    e("s_bfe_u32 s37, s23, 0x10001")
    e("s_cmp_eq_u32 s24, 1")
    e("s_cselect_b32 s36, s37, s36")
    e("s_lshl_b32 s36, s36, 10")
    e("v_lshlrev_b32 v7, 4, v0")
    e("v_add_u32 v84, s36, v7")
    for b in range(1, 8):
        e(f"v_add_u32 v{84+b}, {b*65536}, v84")
    e("s_lshl_b32 s36, s2, 7")
    e(f"s_add_u32 s36, s36, {W_M}")
    e("s_add_u32 s52, s56, s36")
    e("s_addc_u32 s53, s57, 0")
    e("s_cmp_lt_u32 s26, 2")
    e("s_cbranch_scc1 L_route")
    e("s_waitcnt vmcnt(0)")
    e("v_add_u32 v6, 1, v6")
    e("s_branch L_poll")
    g.lab("L_route")
    e("s_and_b32 s30, s27, 7")
    e("s_lshl_b32 s30, s30, 2")
    e("s_sub_u32 s30, 31, s30")
    e("v_sub_u32 v12, s30, v3")
    e("v_lshlrev_b32 v12, 11, v12")
    e("s_lshl_b32 s31, s27, 7")
    e(f"s_add_u32 s31, s31, {W_R}")
    e("s_movk_i32 s32, 0x7ff")
    e("s_waitcnt vmcnt(16)")
    g.stamp(12)
    e("v_add_u32 v6, 1, v6")
    e("v_and_or_b32 v12, v6, s32, v12")
    for n in range(8):
        e(f"s_waitcnt vmcnt({14-2*n})")
        for r in range(4):
            src = "0" if n == 0 else f"v{8+r}"
            e(f"v_dot2_f32_bf16 v{8+r}, v{16+4*n+r}, v{48+4*n+r}, {src}")
    g.stamp(13)
    e("s_nop 2")
    e("v_add_f32 v8, v8, v9"); e("v_add_f32 v10, v10, v11")
    e("s_nop 0")
    e("v_add_f32 v8, v8, v10")
    for sh in (8, 4, 2, 1):
        e("s_nop 1")
        e(f"v_add_f32_dpp v8, v8, v8 row_ror:{sh} row_mask:0xf bank_mask:0xf")
    e("v_cvt_pk_bf16_f32 v9, v8, v8")
    e("v_cmp_u_f32 vcc, v8, v8")
    e("v_ashrrev_i32 v10, 31, v9")
    e("v_or_b32 v10, 0x80000000, v10")
    e("v_xor_b32 v9, v9, v10")
    e("v_cndmask_b32 v9, v9, 0, vcc")
    e("v_and_b32 v9, 0xffff0000, v9")
    e("v_or_b32 v8, v9, v12")
    e("v_or_b32 v9, v9, v12")
    e("s_nop 1")
    e("v_permlane32_swap_b32 v8, v9")
    e("s_nop 0")
    e("v_max_u32 v8, v8, v9")
    e("v_max_u32 v9, v8, v9")
    e("s_nop 1")
    e("v_permlane16_swap_b32 v8, v9")
    e("v_mov_b32 v11, v6")
    e("v_max_u32 v10, v8, v9")
    e("s_mov_b64 exec, 1")
    e(f"buffer_store_dwordx2 v[10:11], v1, s[56:59], s31 offen {ST}")
    e("s_mov_b64 exec, -1")
    g.stamp(2)
    if a.diag > 1:
        e("s_waitcnt vmcnt(0)")
        g.stamp(10)
    e("s_cmp_eq_u32 s25, 1")
    e("s_cbranch_scc0 L_poll")
    e("v_lshlrev_b32 v13, 7, v0")
    e(f"s_mov_b32 s30, {W_R}")
    e("v_and_b32 v14, 1, v0")
    e("v_lshlrev_b32 v92, 7, v14")
    for r in range(1, 4):
        e(f"v_add_u32 v{92+r}, {32*r}, v92")
    e("v_lshrrev_b32 v15, 1, v0")
    e("v_lshlrev_b32 v15, 7, v15")
    e("v_lshl_add_u32 v15, v14, 4, v15")
    e("s_sub_u32 s31, s21, 28")
    e("s_lshl_b32 s31, s31, 13")
    e(f"s_add_u32 s31, s31, {W_M}")
    e("s_add_u32 s32, s31, 4096")
    e(f"s_mov_b32 s34, {a.spin}")
    NP = a.npoll
    for k in range(NP-1):
        e(f"buffer_load_dwordx2 v[{100+2*k}:{101+2*k}], v13, s[56:59], s30 offen {LD}")
        if a.psleep: e(f"s_sleep {a.psleep}")
    g.lab("L_ag")
    for k in range(NP):
        kk = (k+NP-1) % NP
        e(f"buffer_load_dwordx2 v[{100+2*kk}:{101+2*kk}], v13, s[56:59], s30 offen {LD}")
        e(f"s_waitcnt vmcnt({NP-1})")
        e(f"v_cmp_ne_u32 vcc, v{101+2*k}, v6")
        e(f"v_mov_b32 v8, v{100+2*k}")
        e("s_cbranch_vccz L_agok")
        if a.psleep and NP > 1: e(f"s_sleep {a.psleep}")
    e("s_sub_u32 s34, s34, 1")
    e("s_cmp_lg_u32 s34, 0")
    e("s_cbranch_scc1 L_ag")
    g.lab("L_agok")
    g.stamp(11)
    if a.diag: e(f"s_sub_u32 s85, {a.spin}, s34")
    e("s_nop 0")
    e("v_max_u32_dpp v8, v8, v8 quad_perm:[1,0,3,2] row_mask:0xf bank_mask:0xf")
    e("s_nop 1")
    e("v_max_u32_dpp v8, v8, v8 quad_perm:[2,3,0,1] row_mask:0xf bank_mask:0xf")
    e("s_nop 1")
    e("v_max_u32_dpp v8, v8, v8 row_half_mirror row_mask:0xf bank_mask:0xf")
    e("v_xor_b32 v8, 0xf800, v8")
    for r in range(4):
        e(f"ds_bpermute_b32 v{96+r}, v{92+r}, v8")
    e("s_waitcnt lgkmcnt(0)")
    e(f"buffer_store_dwordx4 v[96:99], v15, s[56:59], s31 offen {ST}")
    e(f"buffer_store_dwordx4 v[96:99], v15, s[56:59], s32 offen {ST}")
    g.stamp(8)
    g.lab("L_poll")
    MB = 64 if not a.diag else 92
    e("s_nop 0")
    e("v_readfirstlane_b32 s33, v6")
    e(f"s_mov_b32 s34, {a.spin}")
    e("s_and_b32 s36, s33, 0x7ff")
    e("s_mov_b32 s37, s36")
    g.lab("L_pl")
    e(f"s_load_dwordx8 s[{MB}:{MB+7}], s[52:53], 0 glc")
    e("s_waitcnt lgkmcnt(0)")
    e(f"s_xor_b64 s[38:39], s[{MB}:{MB+1}], s[36:37]")
    e(f"s_xor_b64 s[40:41], s[{MB+2}:{MB+3}], s[36:37]")
    e("s_or_b64 s[38:39], s[38:39], s[40:41]")
    e(f"s_xor_b64 s[40:41], s[{MB+4}:{MB+5}], s[36:37]")
    e("s_or_b64 s[38:39], s[38:39], s[40:41]")
    e(f"s_xor_b64 s[40:41], s[{MB+6}:{MB+7}], s[36:37]")
    e("s_or_b64 s[38:39], s[38:39], s[40:41]")
    e("s_or_b32 s38, s38, s39")
    e("s_and_b32 s38, s38, 0x7ff")
    e("s_cbranch_scc0 L_pok")
    e("s_sub_u32 s34, s34, 1")
    e("s_cmp_lg_u32 s34, 0")
    e("s_cbranch_scc1 L_pl")
    g.lab("L_pok")
    g.stamp(3)
    e(f"s_and_b32 s35, s33, {TAGM}")
    e("s_cmp_eq_u32 s25, 1")
    e("s_cbranch_scc1 L_nox")
    e(f"s_mov_b32 m0, {L_X}")
    for b in range(8):
        e(f"s_and_b32 s38, s{MB+b}, 0xf800")
        e(f"buffer_load_dwordx4 v{84+b}, s[44:47], s38 offen {a.xsnt} lds")
        if b < 7:
            e(f"s_add_u32 m0, m0, {XP}")
    e("v_mov_b32 v12, s35")
    e(f"v_mov_b32 v11, {L_END}")
    e("ds_write_b32 v11, v12")
    g.lab("L_nox")
    e("s_lshr_b32 s38, s2, 5")
    e("s_mov_b32 m0, s38")
    e("s_lshl_b32 s38, s38, 16")
    e(f"s_movrels_b32 s40, s{MB}")
    e("s_and_b32 s39, s40, 0xf800")
    e("s_add_u32 s39, s39, s38")
    e("s_and_b32 s41, s2, 31")
    e("s_lshl_b32 s41, s41, 6")
    e("s_add_u32 s39, s39, s41")
    e("v_and_b32 v8, 7, v0")
    e("v_lshlrev_b32 v8, 3, v8")
    e("v_bfe_u32 v9, v0, 4, 1")
    e("v_lshl_add_u32 v8, v9, 2, v8")
    e("v_lshrrev_b32 v9, 5, v0")
    e("v_lshl_add_u32 v8, v9, 1, v8")
    e("buffer_load_ushort v10, v8, s[44:47], s39 offen")
    e("s_cmp_eq_u32 s25, 1")
    e("s_cbranch_scc1 L_nobar")
    e("s_waitcnt vmcnt(1) lgkmcnt(0)")
    g.stamp(4)
    e("s_barrier")
    g.lab("L_nobar")
    e("s_cmp_lt_u32 s26, 2")
    e("s_cbranch_scc0 L_nocopy")
    e("s_lshr_b32 m0, s27, 3")
    e("s_and_b32 s30, s27, 7")
    e(f"s_movrels_b32 s31, s{MB}")
    e("s_lshl_b32 s30, s30, 2")
    e("s_bfe_u32 s31, s31, 0x5000b")
    e("v_add_u32 v9, s30, v3")
    e("s_mov_b32 s32, 0x7f807f80")
    e("s_mov_b32 s33, 0x00400040")
    e("v_cmp_ne_u32 vcc, s31, v9")
    e("s_and_saveexec_b64 s[42:43], vcc")
    for n in range(8):
        for r in range(4):
            v = 16+4*n+r
            e(f"v_and_b32 v48, s32, v{v}")
            e("v_add_u32 v48, 0x00800080, v48")
            e("v_lshrrev_b32 v48, 9, v48")
            e(f"v_and_or_b32 v{v}, v48, s33, v{v}")
        e(f"buffer_store_dwordx4 v[{16+4*n}:{19+4*n}], v5, s[60:63], s28 offen offset:{n*256} {a.ost}")
    e("s_mov_b64 exec, -1")
    g.lab("L_nocopy")
    e("v_mov_b32 v11, s40")
    e("v_ashrrev_i32 v12, 31, v11")
    e("v_not_b32 v12, v12")
    e("v_or_b32 v12, 0x80000000, v12")
    e("v_xor_b32 v11, v11, v12")
    e("v_and_b32 v11, 0xffff0000, v11")
    e("v_mul_f32 v11, 0xbfb8aa3b, v11")
    e("v_exp_f32 v11, v11")
    e("v_mov_b32 v12, s35")
    e("v_add_f32 v11, 1.0, v11")
    e("v_rcp_f32 v11, v11")
    e(f"s_mul_i32 s30, s2, 7168")
    e("v_cvt_pk_bf16_f32 v11, v11, v11")
    e(f"s_add_u32 s30, s30, {W_Y}")
    e("v_and_b32 v11, 0xffff0000, v11")
    e("s_add_u32 s31, s30, 4096")
    e("v_lshlrev_b32 v7, 4, v0")
    e("s_cmp_eq_u32 s25, 1")
    e("s_cbranch_scc1 L_red")
    e("s_barrier")
    e("s_and_b32 s41, s23, s24")
    e("s_cmp_eq_u32 s41, 1")
    e("s_cbranch_scc1 L_red")
    e("s_barrier")
    e("s_barrier")
    g.lab("L_red")
    g.stamp(5)
    e(f"s_mov_b32 s34, {a.spin}")
    g.lab("L_rl")
    for n in range(7):
        so = "s30" if n < 4 else "s31"
        e(f"buffer_load_dwordx4 v[{16+4*n}:{19+4*n}], v7, s[56:59], {so} offen offset:{(n%4)*1024} {LD}")
    for n in range(7):
        e(f"s_waitcnt vmcnt({6-n})")
        for r in range(4):
            v = 16+4*n+r
            if n == 0 and r == 0: e(f"v_xor_b32 v9, v{v}, v12")
            else: e(f"v_bitop3_b32 v9, v9, v{v}, v12 bitop3:0xf6")
        if n:
            e(f"v_pk_add_f32 v[16:17], v[16:17], v[{16+4*n}:{17+4*n}]")
            e(f"v_pk_add_f32 v[18:19], v[18:19], v[{18+4*n}:{19+4*n}]")
    e(f"v_and_b32 v9, {TAGM}, v9")
    e("v_cmp_ne_u32 vcc, 0, v9")
    e("s_cbranch_vccz L_rok")
    e("s_sub_u32 s34, s34, 1")
    e("s_cmp_lg_u32 s34, 0")
    e("s_cbranch_scc1 L_rl")
    g.lab("L_rok")
    g.stamp(6)
    e("s_nop 0")
    e("v_permlane32_swap_b32 v16, v17")
    e("v_permlane32_swap_b32 v18, v19")
    e("v_lshlrev_b32 v10, 16, v10")
    e("v_add_f32 v16, v16, v17")
    e("v_add_f32 v18, v18, v19")
    e("s_nop 1")
    e("v_permlane16_swap_b32 v16, v18")
    e("s_nop 0")
    e("v_add_f32 v16, v16, v18")
    e("s_nop 1")
    e("v_add_f32_dpp v16, v16, v16 row_ror:8 row_mask:0xf bank_mask:0xf")
    e("s_mov_b32 exec_lo, 0x00ff00ff")
    e("s_mov_b32 exec_hi, 0x00ff00ff")
    e("v_cvt_pk_bf16_f32 v16, v16, v16")
    e("v_and_b32 v16, 0xffff0000, v16")
    e("v_mul_f32 v16, v16, v11")
    e("v_cvt_pk_bf16_f32 v16, v16, v16")
    e("v_and_b32 v16, 0xffff0000, v16")
    e("v_fma_f32 v16, v10, 0, v16")
    e("v_add_f32 v16, v10, v16")
    e("v_cvt_pk_bf16_f32 v16, v16, v16")
    e(f"buffer_store_short v16, v8, s[60:63], s39 offen {a.ost}")
    e(f"s_cmp_eq_u32 s2, {28*8 + a.special}")
    e("s_cbranch_scc0 L_nobump")
    e("s_mov_b64 exec, 1")
    e(f"s_mov_b32 s30, {W_E}")
    e("buffer_store_dword v6, v1, s[56:59], s30 offen sc1")
    g.lab("L_nobump")
    g.stamp(7)
    if a.hold:
        e("s_cmp_eq_u32 s2, 1")
        e("s_cbranch_scc0 L_end")
        g.lab("L_hold")
        e("s_memrealtime s[92:93]")
        e("s_waitcnt lgkmcnt(0)")
        e("s_sub_u32 s92, s92, s90")
        e(f"s_cmp_lt_u32 s92, {a.hold}")
        e("s_cbranch_scc1 L_hold")
    if a.diag:
        g.lab("L_diag")
        e("s_waitcnt vmcnt(0) lgkmcnt(0)")
        g.stamp(9)
        e("s_mov_b64 exec, 1")
        e(f"s_add_u32 s56, s18, {W_DIAG}")
        e("s_addc_u32 s57, s19, 0")
        e("s_mov_b32 s58, 0x100000")
        e("s_mov_b32 s59, 0x20000")
        e("s_mul_i32 s30, s2, 5"); e("s_add_u32 s30, s30, s3"); e("s_lshl_b32 s30, s30, 6")
        e("v_mov_b32 v1, 0")
        e("s_mov_b32 s70, s90")
        for k in range(16):
            e(f"v_mov_b32 v2, s{70+k}")
            e(f"buffer_store_dword v2, v1, s[56:59], s30 offen offset:{4*k}")
    g.lab("L_end")
    e("s_endpgm")

    hdr = open("standalone__moe_arch_mod__sampling.s.ref").read().split("; Override launch")[0] if not a.nohdr else ""
    src = hdr + f"; @launch grid=(256,1,1) block=(320,1,1) lds={a.lds or L_END+64}\n"
    src += f""".amdgcn_target "amdgcn-amd-amdhsa--gfx950"
.text
.globl {KN}
.p2align 8
.type {KN},@function
{KN}:
""" + "\n".join(x for x in g.L if x) + f"""
.section .rodata,"a"
.p2align 6
.amdhsa_kernel {KN}
  .amdhsa_next_free_vgpr {a.vgpr}
  .amdhsa_next_free_sgpr 102
  .amdhsa_accum_offset {min(a.vgpr,256)}
  .amdhsa_group_segment_fixed_size 0
  .amdhsa_kernarg_size 64
  .amdhsa_user_sgpr_count 2
  .amdhsa_user_sgpr_kernarg_segment_ptr 1
  .amdhsa_system_sgpr_workgroup_id_x 1
  .amdhsa_float_denorm_mode_32 3
.end_amdhsa_kernel
"""
    return src

def parse(argv):
    p = argparse.ArgumentParser()
    p.add_argument("-o", default="/dev/stdout")
    p.add_argument("--diag", type=int, default=0)
    p.add_argument("--depth", type=int, default=5)
    p.add_argument("--nt", default="nt")
    p.add_argument("--st", default="sc1")
    p.add_argument("--ld", default="sc1")
    p.add_argument("--ost", default="")
    p.add_argument("--spin", type=int, default=20000)
    p.add_argument("--npoll", type=int, default=3)
    p.add_argument("--psleep", type=int, default=4)
    p.add_argument("--wsoff", type=int, default=0)
    p.add_argument("--hold", type=int, default=0)
    p.add_argument("--special", type=int, default=1)
    p.add_argument("--xnt", default="nt")
    p.add_argument("--wrnt", default="")
    p.add_argument("--xsnt", default="")
    p.add_argument("--rbar", type=int, default=1)
    p.add_argument("--sdepth", type=int, default=0)
    p.add_argument("--lds", type=int, default=0)
    p.add_argument("--vgpr", type=int, default=120)
    p.add_argument("--nohdr", type=int, default=0)
    a = p.parse_args(argv)
    for k in ("nt", "st", "ld", "ost", "xnt", "wrnt", "xsnt"):
        setattr(a, k, getattr(a, k).replace("+", " ").replace("none", ""))
    return a

if __name__ == "__main__":
    a = parse(sys.argv[1:])
    open(a.o, "w").write(gen(a))
```

```python
import sys, argparse

KN = "standalone__moe_arch_mod__sampling_kernel"
WB = 1024*3584*2
XBYTES = 8*32*1024*2

L_B = 0
L_C = 65536
L_X = 98304
XP = 1056
L_H = L_X + 8*XP
HP = 160
L_T = L_H + 8*HP
L_F = L_T + 4
L_END = L_T + 64

W_P = 0
W_Y = 56*8*2048
W_R = W_Y + 256*7168
W_M = W_R + 64*128
W_E = W_M + 256*128
W_END = W_E + 256
W_DIAG = 4 << 20

TAGM = 0x3ff

class G:
    def __init__(s, a):
        s.a = a; s.L = []; s.uid = 0
    def e(s, t): s.L.append("    " + t)
    def lab(s, t): s.L.append(t + ":")
    def u(s, p):
        s.uid += 1; return f"{p}_{s.uid}"
    def stamp(s, k, wait=True):
        if s.a.diag and (k == 0 or not s.a.only or k in s.a.only):
            if not wait:
                s.e("s_memrealtime s[86:87]"); return
            s.e("s_memrealtime s[68:69]")
            s.e("s_waitcnt lgkmcnt(0)")
            s.e(f"s_mov_b32 s{70+k}, s68")

def srd(e, r, lo, hi, n):
    e(f"s_mov_b32 s{r}, {lo}"); e(f"s_mov_b32 s{r+1}, {hi}"); e(f"s_mov_b32 s{r+2}, {n}"); e(f"s_mov_b32 s{r+3}, 0x20000")

def gen(a):
    g = G(a); e = g.e; D = a.depth
    NT = a.nt; ST = a.st; LD = a.ld
    SP = a.special
    g.stamp(0, wait=False)
    if a.hold and not a.diag: e("s_memrealtime s[86:87]")
    e("s_load_dwordx16 s[4:19], s[0:1], 0")
    if a.diag:
        for k in range(1, 16): e(f"s_mov_b32 s{70+k}, 0")
    e("s_cmp_ge_u32 s2, 256")
    e("s_cbranch_scc1 L_end")
    if a.ipf:
        e(f"s_cmp_ge_u32 s2, {8*a.ipf}")
        e("s_cbranch_scc1 L_noipf")
        e("s_getpc_b64 s[20:21]")
        e("v_lshlrev_b32 v1, 7, v0")
        e("v_cmp_gt_u32 vcc, L_code_end-L_pf_base, v1")
        g.lab("L_pf_base")
        e("s_and_saveexec_b64 s[22:23], vcc")
        e("s_cbranch_execz L_ipf2")
        e("global_load_dword v119, v1, s[20:21]")
        g.lab("L_ipf2")
        e("s_mov_b64 exec, s[22:23]")
        g.lab("L_noipf")
    e("v_lshrrev_b32 v1, 6, v0")
    e("v_and_b32 v0, 63, v0")
    e("s_and_b32 s20, s2, 7")
    e("v_readfirstlane_b32 s3, v1")
    e("s_lshr_b32 s21, s2, 3")
    e("s_mov_b32 s24, 0")
    e("s_mov_b32 s25, 0")
    e("s_and_b32 s23, s21, 3")
    e(f"s_cmp_eq_u32 s20, {SP}")
    e("s_cbranch_scc1 L_special")
    e(f"s_cmp_gt_u32 s20, {SP}")
    e("s_subb_u32 s22, s20, 0")
    e("s_lshl_b32 s22, s22, 3")
    e("s_lshr_b32 s27, s21, 2")
    e("s_cmp_lt_u32 s21, 12")
    e("s_cbranch_scc1 L_dec")
    e("s_sub_u32 s27, s27, 1")
    e("s_cmp_ge_u32 s21, 20")
    e("s_cbranch_scc1 L_dec")
    e("s_mov_b32 s27, 3")
    e("s_sub_u32 s23, s21, 12")
    e("s_mov_b32 s24, 1")
    e("s_branch L_dec")
    g.lab("L_special")
    e("s_lshr_b32 s22, s21, 2")
    e("s_lshl_b32 s22, s22, 3")
    e("s_mov_b32 s27, 7")
    e("s_cmp_ge_u32 s21, 28")
    e("s_cselect_b32 s25, 1, 0")
    g.lab("L_dec")
    e("s_add_u32 s22, s22, s27")
    e("s_sub_u32 s26, s20, 1")
    e("s_and_b32 s41, s23, s24")
    e("s_cmp_eq_u32 s3, 4")
    e("s_cbranch_scc1 L_ctl")
    e("s_cmp_eq_u32 s25, 1")
    e("s_cbranch_scc1 L_end")
    e("v_bfe_u32 v1, v0, 1, 2")
    e("v_bfe_u32 v2, v0, 3, 1")
    e("v_lshl_add_u32 v1, v2, 3, v1")
    e("v_lshrrev_b32 v2, 4, v0")
    e("v_and_b32 v3, 1, v0")
    e("v_lshl_add_u32 v3, v2, 1, v3")
    e("v_lshlrev_b32 v3, 4, v3")
    e("v_mul_u32_u24 v4, 7168, v1")
    e("v_add_u32 v4, v4, v3")
    e("v_bfe_u32 v5, v0, 1, 3")
    e("v_lshl_add_u32 v5, v5, 11, v3")
    e("s_and_b32 s28, s3, 1")
    e("s_lshl_b32 s28, s28, 4")
    e("s_lshr_b32 s29, s3, 1")
    e("s_lshl_b32 s29, s29, 2")
    e("s_add_u32 s28, s28, s29")
    e("s_add_u32 s30, s24, 1")
    e("s_lshl_b32 s31, s24, 1")
    e("s_or_b32 s31, s31, 1")
    e("s_sub_u32 s32, 9, s24")
    e("s_lshr_b32 s33, s23, s30")
    e("s_and_b32 s34, s23, s31")
    e("s_lshl_b32 s35, s34, s32")
    e("s_add_u32 s36, s35, s28")
    e("s_mul_i32 s36, s36, 7168")
    e("s_lshl_b32 s37, s22, 7")
    e("s_add_u32 s36, s36, s37")
    e("s_lshl_b32 m0, s3, 10")
    e(f"s_mov_b32 s46, {WB}")
    e("s_mov_b32 s47, 0x20000")
    e("s_cmp_eq_u32 s33, 1")
    e("s_waitcnt lgkmcnt(0)")
    e("s_cselect_b32 s44, s10, s8")
    e("s_cselect_b32 s45, s11, s9")
    e(f"v_mov_b32 v13, {L_T}")
    e("s_barrier")
    e("s_cmp_eq_u32 s24, 1")
    e("s_cbranch_scc1 L_slow")

    def cload():
        e(f"buffer_load_dwordx4 v5, s[48:51], s39 offen {NT} lds")
        e(f"s_add_u32 s39, s39, {8*2048}")
        e("s_add_u32 m0, m0, 1024")

    def bphase(nb, d, tag):
        n1 = nb - a.tail*nb//16
        half = nb//2
        def bload():
            e(f"buffer_load_dwordx4 v4, s[44:47], s36 offen {NT} lds")
            e(f"s_add_u32 s36, s36, {32*7168}")
            e("s_add_u32 m0, m0, 4096")
        e(f"s_mov_b32 s43, {d}")
        g.lab(f"L_b0{tag}")
        bload()
        e("s_sub_u32 s43, s43, 1")
        e("s_cmp_lg_u32 s43, 0")
        e(f"s_cbranch_scc1 L_b0{tag}")
        srd(e, 48, "s12", "s13", WB)
        e("s_lshr_b32 s38, s23, s24")
        e("s_lshl_b32 s38, s38, 2")
        e("s_add_u32 s38, s38, s3")
        e("s_lshl_b32 s39, s22, 17")
        e("s_lshl_b32 s40, s38, 7")
        e("s_add_u32 s39, s39, s40")
        e("s_lshl_b32 s42, s3, 13")
        e(f"s_add_u32 s42, s42, {L_C}")
        e("v_lshrrev_b32 v1, 5, v0")
        e("v_and_b32 v3, 31, v0")
        e("v_lshlrev_b32 v6, 3, v3")
        e("v_lshl_add_u32 v6, v1, 10, v6")
        e("v_add_u32 v7, s42, v6")
        e("s_lshl_b32 s43, s3, 8")
        e("v_add_u32 v6, s43, v6")
        e("v_and_b32 v8, 7, v0")
        e("v_bfe_u32 v9, v0, 3, 1")
        e(f"v_mul_u32_u24 v10, {XP}, v8")
        e("v_lshl_add_u32 v10, v2, 4, v10")
        e(f"v_mul_u32_u24 v11, {half*64}, v9")
        e("v_add_u32 v10, v10, v11")
        if nb == 8:
            e("s_and_b32 s43, s34, 1")
            e("s_lshl_b32 s43, s43, 9")
            e(f"s_add_u32 s43, s43, {L_X}")
            e("v_add_u32 v10, s43, v10")
        else:
            e(f"v_add_u32 v10, {L_X}, v10")
        e("s_lshl_b32 s60, s22, 3")
        e("s_lshl_b32 s52, s33, 2")
        e("s_add_u32 s52, s52, s60")
        e("s_add_u32 s52, s52, s34")
        e("s_lshl_b32 s52, s52, 11")
        e("s_lshl_b32 s53, s3, 9")
        e("s_add_u32 s52, s52, s53")
        e(f"s_add_u32 s56, s18, {a.wsoff}")
        e("s_addc_u32 s57, s19, 0")
        e(f"s_mov_b32 s58, {W_END}")
        e("s_mov_b32 s59, 0x20000")
        e("v_lshlrev_b32 v14, 6, v8")
        e("v_lshl_add_u32 v14, v2, 4, v14")
        if a.ptp:
            e(f"buffer_load_dword v112, v14, s[56:59], s52 offen {a.ptf}")
        e(f"v_mov_b32 v15, {TAGM}")
        sk = g.u("L_noc")
        XF = 16; WF = 48
        def wread(k):
            e(f"ds_read_b64_tr_b16 v[{WF+4*k}:{WF+4*k+1}], v6 offset:{k*4096}")
            e(f"ds_read_b64_tr_b16 v[{WF+4*k+2}:{WF+4*k+3}], v6 offset:{k*4096+2048}")
        def mfma(k):
            acc = 112 if k < half else 116
            xf = XF + 4*(k % half)
            cin = "0" if k in (0, half) else f"v[{acc}:{acc+3}]"
            e(f"v_mfma_f32_16x16x32_bf16 v[{acc}:{acc+3}], v[{WF+4*k}:{WF+4*k+3}], v[{xf}:{xf+3}], {cin}")
        e(f"s_mov_b32 s35, {nb - d}")
        e("s_sub_u32 s40, 1, s41")
        e("s_lshl_b32 s40, s40, 3")
        e(f"s_mov_b32 s37, {a.spin*8}")
        def check(back, out):
            e("s_waitcnt lgkmcnt(0)")
            e("v_readfirstlane_b32 s43, v12")
            e("s_sub_u32 s37, s37, 1")
            e(f"s_cbranch_scc1 {out}")
            e("s_cmp_eq_u32 s43, 0")
            e(f"s_cbranch_scc1 {back}")
        g.lab(f"L_bl{tag}")
        e("ds_read_b32 v12, v13 offset:4")
        e(f"s_waitcnt vmcnt({d-1})")
        bload()
        e("s_sub_u32 s35, s35, 1")
        e("s_cmp_eq_u32 s35, 0")
        e(f"s_cbranch_scc1 L_cl0{tag}")
        check(f"L_bl{tag}", f"L_bg{tag}")
        g.lab(f"L_bg{tag}")
        bload()
        e("s_sub_u32 s35, s35, 1")
        e("s_cmp_lg_u32 s35, 0")
        e(f"s_cbranch_scc1 L_bg{tag}")
        e("s_mov_b32 m0, s42")
        e(f"s_branch L_cf{tag}")
        g.lab(f"L_cl0{tag}")
        e("s_mov_b32 m0, s42")
        g.lab(f"L_cl{tag}")
        e("ds_read_b32 v12, v13 offset:4")
        e(f"s_cmp_le_u32 s40, {8 - a.cpace}")
        e(f"s_cbranch_scc1 L_cw{tag}")
        e(f"s_waitcnt vmcnt({d-1})")
        cload()
        e("s_sub_u32 s40, s40, 1")
        g.lab(f"L_cw{tag}")
        check(f"L_cl{tag}", f"L_cf{tag}")
        g.lab(f"L_cf{tag}")
        e("s_cmp_eq_u32 s40, 0")
        e(f"s_cbranch_scc1 L_cd{tag}")
        g.lab(f"L_cg{tag}")
        cload()
        e("s_sub_u32 s40, s40, 1")
        e("s_cmp_lg_u32 s40, 0")
        e(f"s_cbranch_scc1 L_cg{tag}")
        g.lab(f"L_cd{tag}")
        g.stamp(1)
        if nb == 8:
            e("s_cmp_eq_u32 s41, 1"); e(f"s_cbranch_scc1 {sk}f")
        e(f"s_waitcnt vmcnt({nb - n1 + 8})")
        if nb == 8:
            e(f"s_branch {sk}g")
            g.lab(f"{sk}f")
            e(f"s_waitcnt vmcnt({nb - n1})")
            g.lab(f"{sk}g")
        g.stamp(2)
        e("s_barrier")
        g.stamp(3)
        for k in range(n1): wread(k)
        e("s_waitcnt lgkmcnt(0)")
        g.stamp(4)
        e("s_barrier")
        g.stamp(5)
        for f in range(half):
            e(f"ds_read_b128 v[{XF+4*f}:{XF+4*f+3}], v10 offset:{f*64}")
        e("ds_read_b32 v12, v13")
        nA = n1//2
        for k in range(nA):
            e(f"s_waitcnt lgkmcnt({max(half - k, 0)})")
            mfma(k)
        if nb == 8:
            e("s_cmp_eq_u32 s41, 1"); e(f"s_cbranch_scc1 {sk}d")
        e("s_waitcnt vmcnt(8)")
        if nb == 8:
            e(f"s_branch {sk}e")
            g.lab(f"{sk}d")
            e("s_waitcnt vmcnt(0)")
            g.lab(f"{sk}e")
        e("s_waitcnt lgkmcnt(0)")
        e("s_barrier")
        for k in range(n1, nb): wread(k)
        for k in range(nA, n1): mfma(k)
        for k in range(n1, nb):
            e(f"s_waitcnt lgkmcnt({2*(nb-1-k)})")
            mfma(k)

    bphase(16, D, "n")
    e("s_branch L_pub")
    g.lab("L_slow")
    bphase(8, a.sdepth or max(2, (D+1)//2), "s")
    g.lab("L_pub")
    e("s_lshl_b32 s62, s60, 11")
    e("s_lshl_b32 s53, s3, 7")
    e("s_add_u32 s62, s62, s53")
    e("s_add_u32 s63, s62, 8192")
    e("s_add_u32 s54, s62, 4096")
    e("s_add_u32 s55, s63, 4096")
    e("s_nop 1")
    for r in range(4):
        e(f"v_add_f32_dpp v{112+r}, v{116+r}, v{112+r} row_ror:8 row_mask:0xf bank_mask:0xf")
    e("s_mov_b32 exec_lo, 0x00ff00ff")
    e("s_mov_b32 exec_hi, 0x00ff00ff")
    for r in range(4):
        e(f"v_bfi_b32 v{112+r}, v15, v12, v{112+r}")
    e(f"buffer_store_dwordx4 v[112:115], v14, s[56:59], s52 offen {ST}")
    e("s_mov_b64 exec, -1")
    g.stamp(6)
    e("s_cmp_eq_u32 s41, 1")
    e("s_cbranch_scc1 L_cdone")
    e("v_bfe_u32 v14, v0, 3, 2")
    e("v_lshlrev_b32 v14, 9, v14")
    e("v_lshl_add_u32 v14, v1, 6, v14")
    e("v_lshl_add_u32 v14, v8, 3, v14")
    e(f"v_mul_u32_u24 v16, {HP}, v8")
    e("v_lshl_add_u32 v16, v2, 4, v16")
    e(f"v_add_u32 v16, {L_H}, v16")
    e("s_lshl_b32 s60, s3, 1")
    e("v_add_u32 v17, s60, v1")
    e(f"v_mul_u32_u24 v17, {HP}, v17")
    e("v_bfe_u32 v18, v0, 4, 1")
    e("v_lshl_add_u32 v17, v18, 6, v17")
    e("v_bfe_u32 v18, v0, 1, 2")
    e("v_lshl_add_u32 v17, v18, 4, v17")
    e("v_lshl_add_u32 v17, v9, 3, v17")
    e("v_and_b32 v18, 1, v0")
    e("v_lshl_add_u32 v17, v18, 2, v17")
    e(f"v_add_u32 v17, {L_H}, v17")
    e("s_mov_b32 s60, 229376")
    e("v_mul_lo_u32 v19, v8, s60")
    e("v_lshl_add_u32 v19, v9, 6, v19")
    e("v_lshl_add_u32 v19, v2, 4, v19")
    e(f"s_mul_i32 s52, s38, {2*7168}")
    e("s_lshl_b32 s53, s22, 7")
    e("s_add_u32 s52, s52, s53")
    e(f"s_add_u32 s52, s52, {W_Y}")
    e("s_add_u32 s53, s52, 7168")
    e(f"s_mov_b32 s61, {a.spin}")
    def gloads(slow):
        e(f"buffer_load_dwordx2 v[20:21], v14, s[56:59], s62 offen {LD}")
        e(f"buffer_load_dwordx2 v[22:23], v14, s[56:59], s62 offen offset:2048 {LD}")
        e(f"buffer_load_dwordx2 v[24:25], v14, s[56:59], s63 offen {LD}")
        e(f"buffer_load_dwordx2 v[26:27], v14, s[56:59], s63 offen offset:2048 {LD}")
        if slow:
            e(f"buffer_load_dwordx2 v[28:29], v14, s[56:59], s54 offen {LD}")
            e(f"buffer_load_dwordx2 v[30:31], v14, s[56:59], s54 offen offset:2048 {LD}")
            e(f"buffer_load_dwordx2 v[32:33], v14, s[56:59], s55 offen {LD}")
            e(f"buffer_load_dwordx2 v[34:35], v14, s[56:59], s55 offen offset:2048 {LD}")
    def creads():
        for ks in range(2):
            for tt in range(4):
                r = 48 + 16*ks + 4*tt
                e(f"ds_read_b64_tr_b16 v[{r}:{r+1}], v7 offset:{ks*4096+tt*256}")
                e(f"ds_read_b64_tr_b16 v[{r+2}:{r+3}], v7 offset:{ks*4096+tt*256+2048}")
    def gather(slow):
        t = "s" if slow else "n"
        n = 8 if slow else 4
        if a.gsleep: e(f"s_sleep {a.gsleep}")
        else: e(f"s_waitcnt vmcnt({0 if a.gack else 1 + a.gearly})")
        g.stamp(7)
        gloads(slow)
        e(f"s_waitcnt vmcnt({n+1})")
        g.stamp(11)
        creads()
        if a.diag and (not a.only or 12 in a.only):
            e(f"s_waitcnt vmcnt({n})")
            g.stamp(12)
            e(f"s_waitcnt vmcnt(0)")
            g.stamp(13)
        e(f"s_branch L_gc{t}")
        g.lab(f"L_g{t}")
        if a.gretry: e(f"s_sleep {a.gretry}")
        gloads(slow)
        g.lab(f"L_gc{t}")
        e("s_waitcnt vmcnt(0)")
        e("v_xor_b32 v18, v20, v12")
        for r in range(21, 20 + 2*n):
            e(f"v_bitop3_b32 v18, v18, v{r}, v12 bitop3:0xf6")
        e("v_and_b32 v18, v15, v18")
        e("v_cmp_ne_u32 vcc, 0, v18")
        e(f"s_cbranch_vccz L_gok{t}")
        e("s_sub_u32 s61, s61, 1")
        e("s_cmp_lg_u32 s61, 0")
        e(f"s_cbranch_scc1 L_g{t}")
        g.lab(f"L_gok{t}")
        if slow:
            e("v_pk_add_f32 v[20:21], v[20:21], v[28:29]")
            e("v_pk_add_f32 v[22:23], v[22:23], v[30:31]")
            e("v_pk_add_f32 v[24:25], v[24:25], v[32:33]")
            e("v_pk_add_f32 v[26:27], v[26:27], v[34:35]")
    e("s_cmp_eq_u32 s24, 1")
    e("s_cbranch_scc0 L_gnorm")
    gather(True)
    e("s_branch L_act")
    g.lab("L_gnorm")
    gather(False)
    g.lab("L_act")
    g.stamp(8)
    if a.diag: e(f"s_sub_u32 s84, {a.spin+1}, s61")
    e("v_add_f32 v20, v20, v22"); e("v_add_f32 v21, v21, v23")
    e("v_add_f32 v24, v24, v26"); e("v_add_f32 v25, v25, v27")
    e("v_cvt_pk_bf16_f32 v22, v20, v21")
    e("v_cvt_pk_bf16_f32 v26, v24, v25")
    e("v_lshlrev_b32 v20, 16, v22")
    e("v_and_b32 v21, 0xffff0000, v22")
    e("v_mul_f32 v28, 0xbfb8aa3b, v20")
    e("v_mul_f32 v29, 0xbfb8aa3b, v21")
    e("v_exp_f32 v28, v28")
    e("v_exp_f32 v29, v29")
    e("v_lshlrev_b32 v24, 16, v26")
    e("v_add_f32 v28, 1.0, v28")
    e("v_add_f32 v29, 1.0, v29")
    e("v_rcp_f32 v28, v28")
    e("v_rcp_f32 v29, v29")
    e("v_and_b32 v25, 0xffff0000, v26")
    e("v_mul_f32 v20, v20, v28")
    e("v_mul_f32 v21, v21, v29")
    e("v_cvt_pk_bf16_f32 v22, v20, v21")
    e("v_lshlrev_b32 v20, 16, v22")
    e("v_and_b32 v21, 0xffff0000, v22")
    e("v_mul_f32 v20, v20, v24")
    e("v_mul_f32 v21, v21, v25")
    e("v_cvt_pk_bf16_f32 v22, v20, v21")
    e("ds_write_b32 v17, v22")
    e("v_cmp_eq_u32 vcc, 1, v9")
    e("s_waitcnt lgkmcnt(0)")
    e("s_barrier")
    e("ds_read_b128 v[20:23], v16")
    e("ds_read_b128 v[24:27], v16 offset:64")
    e("s_waitcnt lgkmcnt(1)")
    for tt in range(4):
        e(f"v_mfma_f32_16x16x32_bf16 v[{80+4*tt}:{83+4*tt}], v[{48+4*tt}:{51+4*tt}], v[20:23], 0")
    e("s_waitcnt lgkmcnt(0)")
    for tt in range(4):
        e(f"v_mfma_f32_16x16x32_bf16 v[{80+4*tt}:{83+4*tt}], v[{64+4*tt}:{67+4*tt}], v[24:27], v[{80+4*tt}:{83+4*tt}]")
    e("s_nop 5")
    for r in range(4):
        e(f"v_cndmask_b32 v{80+r}, v{80+r}, v{84+r}, vcc")
    for r in range(4):
        e(f"v_bfi_b32 v{80+r}, v15, v12, v{80+r}")
    e(f"buffer_store_dwordx4 v[80:83], v19, s[56:59], s52 offen {ST}")
    for r in range(4):
        e(f"v_cndmask_b32 v{88+r}, v{88+r}, v{92+r}, vcc")
    for r in range(4):
        e(f"v_bfi_b32 v{88+r}, v15, v12, v{88+r}")
    e(f"buffer_store_dwordx4 v[88:91], v19, s[56:59], s53 offen {ST}")
    g.stamp(9)
    if a.rdelay < 0:
        e("s_waitcnt vmcnt(0)")
    e("s_barrier")
    g.lab("L_cdone")
    if a.diag:
        e("s_branch L_diag")
    e("s_endpgm")

    PT = a.pretouch + (a.pty == 1)
    MB = 88
    CP = 60
    g.lab("L_ctl")
    e("s_setprio 3")
    e("s_lshl_b32 s27, s26, 5")
    e("s_add_u32 s27, s27, s21")
    e("v_lshlrev_b32 v7, 4, v0")
    e("s_lshl_b32 s28, s27, 13")
    e("s_add_u32 s29, s28, 4096")
    e("v_mov_b32 v1, 0")
    e(f"v_mov_b32 v3, {L_T}")
    e("ds_write_b32 v3, v1 offset:4")
    e(f"s_mov_b32 s30, {W_E}")
    e("s_lshl_b32 s36, s2, 7")
    e(f"s_add_u32 s36, s36, {W_M}")
    e(f"s_mov_b32 s58, {W_END}")
    e("s_mov_b32 s59, 0x20000")
    e(f"s_mov_b32 s46, {XBYTES}")
    e("s_mov_b32 s47, 0x20000")
    e("s_mov_b32 s50, 2048")
    e("s_mov_b32 s51, 0x20000")
    e("s_cmp_lt_u32 s26, 2")
    e("s_waitcnt lgkmcnt(0)")
    e("s_mov_b32 s44, s4"); e("s_mov_b32 s45, s5")
    e("s_cbranch_scc0 L_norl")
    e("s_mov_b32 s48, s6"); e("s_mov_b32 s49, s7")
    e(f"buffer_load_dwordx4 v[48:51], v7, s[48:51], 0 offen {a.wrnt}")
    e(f"buffer_load_dwordx4 v[52:55], v7, s[48:51], 0 offen offset:1024 {a.wrnt}")
    for n in range(8):
        e(f"buffer_load_dwordx4 v[{16+4*n}:{19+4*n}], v7, s[44:47], {'s28' if n < 4 else 's29'} offen offset:{(n%4)*1024} {a.xnt}")
    g.lab("L_norl")
    e(f"s_add_u32 s56, s18, {a.wsoff}")
    e("s_addc_u32 s57, s19, 0")
    e("buffer_load_dword v6, v1, s[56:59], s30 offen sc1")
    if a.pretouch:
        e("v_lshlrev_b32 v57, 7, v0")
        e("v_mul_u32_u24 v2, s25, v57")
        e(f"s_cmp_eq_u32 s25, 1")
        e(f"s_cselect_b32 s37, {W_R}, s36")
        e("buffer_load_dword v2, v2, s[56:59], s37 offen")
    g.stamp(1)
    e("s_barrier")
    e("s_add_u32 s52, s56, s36")
    e("s_addc_u32 s53, s57, 0")
    if a.pty == 1:
        e(f"s_mul_i32 s54, s2, 7168")
        e(f"s_add_u32 s54, s54, {W_Y}")
        e("v_lshlrev_b32 v59, 7, v0")
        e("v_cmp_gt_u32 vcc, 56, v0")
        e("s_and_saveexec_b64 s[42:43], vcc")
        e(f"buffer_load_dword v58, v59, s[56:59], s54 offen {a.ptf}")
        e("s_mov_b64 exec, -1")
    e("s_lshr_b32 s37, s23, s24")
    e("s_and_b32 s37, s37, 1")
    e("s_lshl_b32 s37, s37, 10")
    e("v_add_u32 v84, s37, v7")
    for b in range(1, 8):
        e(f"v_add_u32 v{84+b}, {b*65536}, v84")
    e("s_cmp_lt_u32 s26, 2")
    e("s_cbranch_scc1 L_route")
    e(f"s_waitcnt vmcnt({PT})")
    e("v_add_u32 v6, 1, v6")
    e("s_branch L_poll")
    g.lab("L_route")
    e("s_and_b32 s30, s27, 7")
    e("s_lshl_b32 s30, s30, 13")
    e(f"s_sub_u32 s30, {31 << 11}, s30")
    e("s_lshl_b32 s31, s27, 7")
    e(f"s_add_u32 s31, s31, {W_R}")
    for tk in range(4):
        for hlf in range(2):
            n = 2*tk + hlf
            e(f"s_waitcnt vmcnt({7 - n + 1 + PT})")
            for r in range(4):
                src = "0" if (hlf == 0 and r == 0) else f"v{8+tk}"
                e(f"v_dot2_f32_bf16 v{8+tk}, v{16+4*n+r}, v{48+4*hlf+r}, {src}")
    g.stamp(12)
    e("s_nop 1")
    e("s_nop 0")
    e("v_permlane32_swap_b32 v8, v9")
    e("v_permlane32_swap_b32 v10, v11")
    e("v_bfe_u32 v13, v0, 4, 1")
    e("v_add_f32 v8, v8, v9")
    e("v_add_f32 v10, v10, v11")
    e("v_lshrrev_b32 v14, 5, v0")
    e("v_lshl_add_u32 v13, v13, 1, v14")
    e("v_permlane16_swap_b32 v8, v10")
    e("v_lshlrev_b32 v13, 11, v13")
    e("v_add_f32 v8, v8, v10")
    e("v_sub_u32 v12, s30, v13")
    for sh in (8, 4, 2, 1):
        e("s_nop 0" if sh == 8 else "s_nop 1")
        e(f"v_add_f32_dpp v8, v8, v8 row_ror:{sh} row_mask:0xf bank_mask:0xf")
    e("s_movk_i32 s32, 0x7ff")
    e(f"s_waitcnt vmcnt({PT})")
    e("v_add_u32 v6, 1, v6")
    e("v_cvt_pk_bf16_f32 v9, v8, v8")
    e("v_cmp_u_f32 vcc, v8, v8")
    e("v_and_or_b32 v12, v6, s32, v12")
    e("v_ashrrev_i32 v10, 31, v9")
    e("v_or_b32 v10, 0x80000000, v10")
    e("v_xor_b32 v9, v9, v10")
    e("v_cndmask_b32 v9, v9, 0, vcc")
    e("v_and_b32 v9, 0xffff0000, v9")
    e("v_or_b32 v8, v9, v12")
    e("v_or_b32 v9, v9, v12")
    e("s_nop 1")
    e("v_permlane32_swap_b32 v8, v9")
    e("s_nop 0")
    e("v_max_u32 v8, v8, v9")
    e("v_max_u32 v9, v8, v9")
    e("s_nop 1")
    e("v_permlane16_swap_b32 v8, v9")
    e("v_mov_b32 v11, v6")
    e("v_max_u32 v10, v8, v9")
    e("s_mov_b64 exec, 1")
    e(f"buffer_store_dwordx2 v[10:11], v1, s[56:59], s31 offen {ST}")
    e("s_mov_b64 exec, -1")
    g.stamp(2)
    e("s_cmp_eq_u32 s25, 1")
    e("s_cbranch_scc0 L_poll")
    e("v_lshlrev_b32 v13, 7, v0")
    e(f"s_mov_b32 s30, {W_R}")
    e("v_and_b32 v14, 1, v0")
    e("v_lshlrev_b32 v92, 7, v14")
    for r in range(1, 4):
        e(f"v_add_u32 v{92+r}, {32*r}, v92")
    e("v_lshrrev_b32 v15, 1, v0")
    e("v_lshlrev_b32 v15, 7, v15")
    e("v_lshl_add_u32 v15, v14, 4, v15")
    e("s_sub_u32 s31, s21, 28")
    e("s_lshl_b32 s31, s31, 13")
    e(f"s_add_u32 s31, s31, {W_M}")
    e("s_add_u32 s32, s31, 4096")
    e(f"s_mov_b32 s34, {a.spin}")
    if a.agdelay < 0: e("s_waitcnt vmcnt(0)")
    elif a.agdelay: e(f"s_sleep {a.agdelay}")
    NP = a.npoll
    for k in range(NP-1):
        e(f"buffer_load_dwordx2 v[{100+2*k}:{101+2*k}], v13, s[56:59], s30 offen {LD}")
        if a.psleep: e(f"s_sleep {a.psleep}")
    g.lab("L_ag")
    for k in range(NP):
        kk = (k+NP-1) % NP
        e(f"buffer_load_dwordx2 v[{100+2*kk}:{101+2*kk}], v13, s[56:59], s30 offen {LD}")
        e(f"s_waitcnt vmcnt({NP-1})")
        e(f"v_cmp_ne_u32 vcc, v{101+2*k}, v6")
        e(f"v_mov_b32 v8, v{100+2*k}")
        e("s_cbranch_vccz L_agok")
        if a.psleep and NP > 1: e(f"s_sleep {a.psleep}")
    e("s_sub_u32 s34, s34, 1")
    e("s_cmp_lg_u32 s34, 0")
    e("s_cbranch_scc1 L_ag")
    g.lab("L_agok")
    g.stamp(11)
    if a.diag: e(f"s_sub_u32 s85, {a.spin+1}, s34")
    e("s_nop 0")
    e("v_max_u32_dpp v8, v8, v8 quad_perm:[1,0,3,2] row_mask:0xf bank_mask:0xf")
    e("s_nop 1")
    e("v_max_u32_dpp v8, v8, v8 quad_perm:[2,3,0,1] row_mask:0xf bank_mask:0xf")
    e("s_nop 1")
    e("v_max_u32_dpp v8, v8, v8 row_half_mirror row_mask:0xf bank_mask:0xf")
    e("v_xor_b32 v8, 0xf800, v8")
    for r in range(4):
        e(f"ds_bpermute_b32 v{96+r}, v{92+r}, v8")
    e("s_waitcnt lgkmcnt(0)")
    e(f"buffer_store_dwordx4 v[96:99], v15, s[56:59], s31 offen {ST}")
    e(f"buffer_store_dwordx4 v[96:99], v15, s[56:59], s32 offen {ST}")
    g.stamp(8)
    g.lab("L_poll")
    e(f"v_and_b32 v12, {TAGM}, v6")
    e("v_readfirstlane_b32 s33, v6")
    e("ds_write_b32 v3, v12")
    e(f"s_mov_b32 s34, {a.spin*4}")
    e("s_and_b32 s36, s33, 0x7ff")
    e("s_mov_b32 s37, s36")
    if a.freerun:
        e("s_not_b64 s[38:39], s[36:37]")
        for k in range(4): e(f"s_mov_b64 s[{MB+2*k}:{MB+2*k+1}], s[38:39]")
    g.lab("L_pl")
    e(f"s_load_dwordx8 s[{MB}:{MB+7}], s[52:53], 0 glc")
    if a.freerun: e(f"s_sleep {a.freerun}")
    else: e("s_waitcnt lgkmcnt(0)")
    for k in range(4): e(f"s_mov_b64 s[{CP+2*k}:{CP+2*k+1}], s[{MB+2*k}:{MB+2*k+1}]")
    e(f"s_xor_b64 s[38:39], s[{CP}:{CP+1}], s[36:37]")
    e(f"s_xor_b64 s[42:43], s[{CP+2}:{CP+3}], s[36:37]")
    e("s_or_b64 s[38:39], s[38:39], s[42:43]")
    e(f"s_xor_b64 s[42:43], s[{CP+4}:{CP+5}], s[36:37]")
    e("s_or_b64 s[38:39], s[38:39], s[42:43]")
    e(f"s_xor_b64 s[42:43], s[{CP+6}:{CP+7}], s[36:37]")
    e("s_or_b64 s[38:39], s[38:39], s[42:43]")
    e("s_or_b32 s38, s38, s39")
    e("s_and_b32 s38, s38, 0x7ff")
    e("s_cbranch_scc0 L_pok")
    e("s_sub_u32 s34, s34, 1")
    e("s_cmp_lg_u32 s34, 0")
    e("s_cbranch_scc1 L_pl")
    g.lab("L_pok")
    e("s_cmp_eq_u32 s25, 1")
    e("s_cbranch_scc1 L_nox")
    e(f"s_mov_b32 m0, {L_X}")
    for b in range(8):
        e(f"s_and_b32 s38, s{CP+b}, 0xf800")
        e(f"buffer_load_dwordx4 v{84+b}, s[44:47], s38 offen {a.xsnt} lds")
        if b < 7:
            e(f"s_add_u32 m0, m0, {XP}")
    e("ds_write_b32 v3, v3 offset:4")
    g.stamp(3)
    e("s_barrier")
    g.lab("L_nox")
    e("s_lshr_b32 s38, s2, 5")
    e("s_mov_b32 m0, s38")
    e("s_lshl_b32 s38, s38, 16")
    e(f"s_movrels_b32 s40, s{CP}")
    e("s_and_b32 s39, s40, 0xf800")
    e("s_add_u32 s39, s39, s38")
    e("s_and_b32 s38, s2, 31")
    e("s_lshl_b32 s38, s38, 6")
    e("s_add_u32 s39, s39, s38")
    e("v_and_b32 v8, 7, v0")
    e("v_lshlrev_b32 v8, 3, v8")
    e("v_bfe_u32 v9, v0, 4, 1")
    e("v_lshl_add_u32 v8, v9, 2, v8")
    e("v_lshrrev_b32 v9, 5, v0")
    e("v_lshl_add_u32 v8, v9, 1, v8")
    e("s_cmp_eq_u32 s25, 1")
    e("s_cbranch_scc1 L_nobar")
    e("s_waitcnt vmcnt(0) lgkmcnt(0)")
    g.stamp(4)
    e("s_barrier")
    e("s_barrier")
    g.lab("L_nobar")
    e("buffer_load_ushort v10, v8, s[44:47], s39 offen")
    e(f"s_mul_i32 s54, s2, 7168")
    e(f"s_add_u32 s54, s54, {W_Y}")
    if a.pty == 2:
        e("v_lshlrev_b32 v59, 7, v0")
        e("v_cmp_gt_u32 vcc, 56, v0")
        e("s_and_saveexec_b64 s[42:43], vcc")
        e(f"buffer_load_dword v58, v59, s[56:59], s54 offen {a.ptf}")
        e("s_mov_b64 exec, -1")
    srd(e, 48, "s14", "s15", XBYTES)
    e("s_cmp_lt_u32 s26, 2")
    e("s_cbranch_scc0 L_nocopy")
    e("s_lshr_b32 m0, s27, 3")
    e("s_and_b32 s30, s27, 7")
    e(f"s_movrels_b32 s31, s{CP}")
    e("s_lshl_b32 s30, s30, 2")
    e("s_bfe_u32 s31, s31, 0x5000b")
    e("s_sub_u32 s31, s31, s30")
    e("s_mov_b32 s32, 0x7f807f80")
    e("s_mov_b32 s35, 0x00400040")
    for tk in range(4):
        e(f"s_cmp_eq_u32 s31, {tk}")
        e(f"s_cbranch_scc1 L_cp{tk}")
        for n in (2*tk, 2*tk+1):
            for r in range(4):
                v = 16+4*n+r
                e(f"v_and_b32 v48, s32, v{v}")
                e("v_add_u32 v48, 0x00800080, v48")
                e("v_lshrrev_b32 v48, 9, v48")
                e(f"v_and_or_b32 v{v}, v48, s35, v{v}")
            e(f"buffer_store_dwordx4 v[{16+4*n}:{19+4*n}], v7, s[48:51], {'s28' if n < 4 else 's29'} offen offset:{(n%4)*1024} {a.ost}")
        g.lab(f"L_cp{tk}")
    g.lab("L_nocopy")
    e("v_mov_b32 v11, s40")
    e("v_ashrrev_i32 v13, 31, v11")
    e("v_not_b32 v13, v13")
    e("v_or_b32 v13, 0x80000000, v13")
    e("v_xor_b32 v11, v11, v13")
    e("v_and_b32 v11, 0xffff0000, v11")
    e("v_mul_f32 v11, 0xbfb8aa3b, v11")
    e("v_exp_f32 v11, v11")
    e(f"s_mul_i32 s30, s2, 7168")
    e("v_add_f32 v11, 1.0, v11")
    e("v_rcp_f32 v11, v11")
    e(f"s_add_u32 s30, s30, {W_Y}")
    e("v_cvt_pk_bf16_f32 v11, v11, v11")
    e("s_add_u32 s31, s30, 4096")
    e("v_and_b32 v11, 0xffff0000, v11")
    e("s_or_b32 s41, s41, s25")
    e("s_cmp_eq_u32 s41, 1")
    e("s_cbranch_scc1 L_hint")
    e("s_barrier")
    e("s_barrier")
    if a.rdelay > 0: e(f"s_sleep {a.rdelay}")
    e("s_branch L_red")
    g.lab("L_hint")
    e(f"s_add_u32 s32, s30, {a.hintg*128}")
    e("s_add_u32 s52, s56, s32")
    e("s_addc_u32 s53, s57, 0")
    e(f"s_mov_b32 s34, {a.spin}")
    e(f"s_and_b32 s36, s33, {TAGM}")
    g.lab("L_hl")
    e("s_load_dword s35, s[52:53], 0 glc")
    e("s_waitcnt lgkmcnt(0)")
    e(f"s_and_b32 s35, s35, {TAGM}")
    e("s_cmp_eq_u32 s35, s36")
    e("s_cbranch_scc1 L_red")
    e("s_sub_u32 s34, s34, 1")
    e("s_cmp_lg_u32 s34, 0")
    e("s_cbranch_scc1 L_hl")
    g.lab("L_red")
    g.stamp(5)
    e(f"s_mov_b32 s34, {a.spin}")
    if a.pend:
        def rload(n):
            so = "s30" if n < 4 else "s31"
            e(f"buffer_load_dwordx4 v[{16+4*n}:{19+4*n}], v7, s[56:59], {so} offen offset:{(n%4)*1024} {LD}")
        def rcheck(n):
            v = 16+4*n
            e(f"v_xor_b32 v9, v{v}, v12")
            for r in range(1, 4): e(f"v_bitop3_b32 v9, v9, v{v+r}, v12 bitop3:0xf6")
            e(f"v_and_b32 v9, {TAGM}, v9")
            e("v_cmp_ne_u32 vcc, 0, v9")
        for n in range(7): rload(n)
        e("s_mov_b32 s35, 0")
        for n in range(7):
            e(f"s_waitcnt vmcnt({6-n})")
            rcheck(n)
            e("s_cmp_lg_u64 vcc, 0")
            e(f"s_cselect_b32 s32, {1 << n}, 0")
            e("s_or_b32 s35, s35, s32")
        e("s_cbranch_scc0 L_rsum")
        g.lab("L_rl")
        if a.rretry: e(f"s_sleep {a.rretry}")
        for n in range(7):
            e(f"s_bitcmp1_b32 s35, {n}")
            e(f"s_cbranch_scc0 L_rs{n}")
            rload(n)
            g.lab(f"L_rs{n}")
        e("s_waitcnt vmcnt(0)")
        for n in range(7):
            e(f"s_bitcmp1_b32 s35, {n}")
            e(f"s_cbranch_scc0 L_rt{n}")
            rcheck(n)
            e(f"s_cbranch_vccnz L_rt{n}")
            e(f"s_bitset0_b32 s35, {n}")
            g.lab(f"L_rt{n}")
        e("s_cmp_eq_u32 s35, 0")
        e("s_cbranch_scc1 L_rsum")
        e("s_sub_u32 s34, s34, 1")
        e("s_cmp_lg_u32 s34, 0")
        e("s_cbranch_scc1 L_rl")
        g.lab("L_rsum")
        for h in (0, 2):
            e(f"v_pk_add_f32 v[{16+h}:{17+h}], v[{16+h}:{17+h}], v[{20+h}:{21+h}]")
            e(f"v_pk_add_f32 v[{24+h}:{25+h}], v[{24+h}:{25+h}], v[{28+h}:{29+h}]")
            e(f"v_pk_add_f32 v[{32+h}:{33+h}], v[{32+h}:{33+h}], v[{36+h}:{37+h}]")
        for h in (0, 2):
            e(f"v_pk_add_f32 v[{16+h}:{17+h}], v[{16+h}:{17+h}], v[{24+h}:{25+h}]")
            e(f"v_pk_add_f32 v[{32+h}:{33+h}], v[{32+h}:{33+h}], v[{40+h}:{41+h}]")
        for h in (0, 2):
            e(f"v_pk_add_f32 v[{16+h}:{17+h}], v[{16+h}:{17+h}], v[{32+h}:{33+h}]")
        e("s_nop 0")
    else:
        g.lab("L_rl")
        for n in range(7):
            so = "s30" if n < 4 else "s31"
            e(f"buffer_load_dwordx4 v[{16+4*n}:{19+4*n}], v7, s[56:59], {so} offen offset:{(n%4)*1024} {LD}")
        for n in range(7):
            e(f"s_waitcnt vmcnt({6-n})")
            for r in range(4):
                v = 16+4*n+r
                if n == 0 and r == 0: e(f"v_xor_b32 v9, v{v}, v12")
                else: e(f"v_bitop3_b32 v9, v9, v{v}, v12 bitop3:0xf6")
            if n:
                e(f"v_pk_add_f32 v[16:17], v[16:17], v[{16+4*n}:{17+4*n}]")
                e(f"v_pk_add_f32 v[18:19], v[18:19], v[{18+4*n}:{19+4*n}]")
        e(f"v_and_b32 v9, {TAGM}, v9")
        e("v_cmp_ne_u32 vcc, 0, v9")
        e("s_cbranch_vccz L_rok")
        e("s_sub_u32 s34, s34, 1")
        e("s_cmp_lg_u32 s34, 0")
        e("s_cbranch_scc1 L_rl")
    g.lab("L_rok")
    g.stamp(6)
    if a.diag: e(f"s_sub_u32 s84, {a.spin+1}, s34")
    e("s_nop 0")
    e("v_permlane32_swap_b32 v16, v17")
    e("v_permlane32_swap_b32 v18, v19")
    e("v_lshlrev_b32 v10, 16, v10")
    e("v_add_f32 v16, v16, v17")
    e("v_add_f32 v18, v18, v19")
    e("s_nop 1")
    e("v_permlane16_swap_b32 v16, v18")
    e("s_nop 0")
    e("v_add_f32 v16, v16, v18")
    e("s_nop 1")
    e("v_add_f32_dpp v16, v16, v16 row_ror:8 row_mask:0xf bank_mask:0xf")
    e("s_mov_b32 exec_lo, 0x00ff00ff")
    e("s_mov_b32 exec_hi, 0x00ff00ff")
    e("v_cvt_pk_bf16_f32 v16, v16, v16")
    e("v_and_b32 v16, 0xffff0000, v16")
    e("v_mul_f32 v16, v16, v11")
    e("v_cvt_pk_bf16_f32 v16, v16, v16")
    e("v_and_b32 v16, 0xffff0000, v16")
    e("v_fma_f32 v16, v10, 0, v16")
    e("v_add_f32 v16, v10, v16")
    e("v_cvt_pk_bf16_f32 v16, v16, v16")
    e(f"buffer_store_short v16, v8, s[48:51], s39 offen {a.ost2}")
    e(f"s_cmp_eq_u32 s2, {28*8 + SP}")
    e("s_cbranch_scc0 L_nobump")
    e("s_mov_b64 exec, 1")
    e(f"s_mov_b32 s30, {W_E}")
    e("buffer_store_dword v6, v1, s[56:59], s30 offen sc1")
    g.lab("L_nobump")
    g.stamp(7)
    if a.hold:
        e("s_cmp_eq_u32 s2, 1")
        e("s_cbranch_scc0 L_end")
        g.lab("L_hold")
        e("s_memrealtime s[68:69]")
        e("s_waitcnt lgkmcnt(0)")
        e("s_sub_u32 s68, s68, s86")
        e(f"s_cmp_lt_u32 s68, {a.hold}")
        e("s_cbranch_scc1 L_hold")
    if a.diag:
        g.lab("L_diag")
        e("s_waitcnt vmcnt(0) lgkmcnt(0)")
        g.stamp(10)
        e("s_mov_b64 exec, 1")
        e(f"s_add_u32 s56, s18, {W_DIAG}")
        e("s_addc_u32 s57, s19, 0")
        e("s_mov_b32 s58, 0x100000")
        e("s_mov_b32 s59, 0x20000")
        e("s_mul_i32 s30, s2, 5"); e("s_add_u32 s30, s30, s3"); e("s_lshl_b32 s30, s30, 6")
        e("v_mov_b32 v1, 0")
        e("s_mov_b32 s70, s86")
        for k in range(16):
            e(f"v_mov_b32 v2, s{70+k}")
            e(f"buffer_store_dword v2, v1, s[56:59], s30 offen offset:{4*k}")
    g.lab("L_end")
    e("s_endpgm")
    g.lab("L_code_end")

    hdr = open("standalone__moe_arch_mod__sampling.s.ref").read().split("; Override launch")[0] if not a.nohdr else ""
    src = hdr + f"; @launch grid=(256,1,1) block=(320,1,1) lds={a.lds or L_END}\n"
    src += f""".amdgcn_target "amdgcn-amd-amdhsa--gfx950"
.text
.globl {KN}
.p2align 8
.type {KN},@function
{KN}:
""" + "\n".join(x for x in g.L if x) + f"""
.section .rodata,"a"
.p2align 6
.amdhsa_kernel {KN}
  .amdhsa_next_free_vgpr {a.vgpr}
  .amdhsa_next_free_sgpr 96
  .amdhsa_accum_offset {min(a.vgpr,256)}
  .amdhsa_group_segment_fixed_size 0
  .amdhsa_kernarg_size 64
  .amdhsa_user_sgpr_count 2
  .amdhsa_user_sgpr_kernarg_segment_ptr 1
  .amdhsa_system_sgpr_workgroup_id_x 1
  .amdhsa_float_denorm_mode_32 3
.end_amdhsa_kernel
"""
    return src

def parse(argv):
    p = argparse.ArgumentParser()
    p.add_argument("-o", default="/dev/stdout")
    for k, v in dict(diag=0, depth=5, sdepth=0, spin=20000, wsoff=0, nohdr=1, hold=0, special=1, rbar=1, lds=0, vgpr=120,
                     tail=4, c1=4, gearly=0, rdelay=-1, agdelay=-1, freerun=1, pretouch=1, hintg=24, cmid=1, pend=1, cpace=8, npoll=1, psleep=0, gack=0, gsleep=0, gretry=0, rretry=0, ptp=1, pty=0, ipf=1).items():
        p.add_argument("--" + k, type=int, default=v)
    for k, v in dict(nt="nt", st="sc1", ld="sc1", ost="", ost2="", xnt="nt", wrnt="", xsnt="", ptf="").items():
        p.add_argument("--" + k, default=v)
    p.add_argument("--only", default="")
    a = p.parse_args(argv)
    for k in ("nt", "st", "ld", "ost", "ost2", "xnt", "wrnt", "xsnt", "ptf"):
        setattr(a, k, getattr(a, k).replace("+", " ").replace("none", ""))
    a.only = [int(x) for x in a.only.split(",") if x]
    return a

if __name__ == "__main__":
    a = parse(sys.argv[1:])
    open(a.o, "w").write(gen(a))
```

```python
import sys, argparse

KN = "standalone__moe_arch_mod__sampling_kernel"
WB = 1024*3584*2
XBYTES = 8*32*1024*2

L_B = 0
L_C = 65536
L_X = 98304
XP = 1056
L_H = L_X + 8*XP
HP = 160
L_T = L_H + 8*HP
L_F = L_T + 4
L_END = L_T + 64

W_P = 0
W_Y = 56*8*2048
W_R = W_Y + 256*7168
W_M = W_R + 64*128
W_E = W_M + 256*128
W_END = W_E + 256
W_DIAG = 4 << 20

TAGM = 0x3ff

class G:
    def __init__(s, a):
        s.a = a; s.L = []; s.uid = 0
    def e(s, t): s.L.append("    " + t)
    def lab(s, t): s.L.append(t + ":")
    def u(s, p):
        s.uid += 1; return f"{p}_{s.uid}"
    def stamp(s, k, wait=True):
        if s.a.diag and (k == 0 or not s.a.only or k in s.a.only):
            if not wait:
                s.e("s_memrealtime s[86:87]"); return
            s.e("s_memrealtime s[68:69]")
            s.e("s_waitcnt lgkmcnt(0)")
            s.e(f"s_mov_b32 s{70+k}, s68")

def srd(e, r, lo, hi, n):
    e(f"s_mov_b32 s{r}, {lo}"); e(f"s_mov_b32 s{r+1}, {hi}"); e(f"s_mov_b32 s{r+2}, {n}"); e(f"s_mov_b32 s{r+3}, 0x20000")

def gen(a):
    g = G(a); e = g.e; D = a.depth
    NT = a.nt; ST = a.st; LD = a.ld
    SP = a.special
    PT = a.pretouch + (a.pty == 1)
    MB = 88
    CP = 60
    g.stamp(0, wait=False)
    if a.hold and not a.diag: e("s_memrealtime s[86:87]")
    e("s_load_dwordx16 s[4:19], s[0:1], 0")
    if a.ipf:
        e("s_getpc_b64 s[20:21]")
        g.lab("L_pf_base")
        e("v_lshlrev_b32 v7, 7, v0")
        e("v_cmp_gt_u32 vcc, L_code_end-L_pf_base, v7")
        e("s_and_saveexec_b64 s[22:23], vcc")
        e("s_cbranch_execz L_ipf2")
        if a.ipf < 32:
            e(f"s_cmp_ge_u32 s2, {8*a.ipf}")
            e("s_cbranch_scc1 L_ipf2")
        e(f"global_load_dword v119, v7, s[20:21] {a.ipff}")
        g.lab("L_ipf2")
        e("s_mov_b64 exec, s[22:23]")
    e("v_readfirstlane_b32 s3, v0")
    e("v_and_b32 v0, 63, v0")
    e("s_cmp_ge_u32 s2, 256")
    e("s_cbranch_scc1 L_end")
    if a.diag:
        for k in range(1, 16): e(f"s_mov_b32 s{70+k}, 0")
    e("s_and_b32 s20, s2, 7")
    e("s_lshr_b32 s21, s2, 3")
    e("s_lshr_b32 s3, s3, 6")
    e("s_cmp_eq_u32 s3, 4")
    e("s_cbranch_scc0 L_cmp")
    e("s_setprio 3")
    e("s_sub_u32 s26, s20, 1")
    e("s_lshl_b32 s27, s26, 5")
    e("s_add_u32 s27, s27, s21")
    e("v_lshlrev_b32 v7, 4, v0")
    e("s_lshl_b32 s28, s27, 13")
    e("s_add_u32 s29, s28, 4096")
    e("v_mov_b32 v1, 0")
    e(f"v_mov_b32 v3, {L_T}")
    e("ds_write_b32 v3, v1 offset:4")
    e(f"s_mov_b32 s46, {XBYTES}")
    e("s_mov_b32 s47, 0x20000")
    e("s_movk_i32 s50, 2048")
    e("s_mov_b32 s51, s47")
    e(f"s_mov_b32 s58, {W_END}")
    e("s_mov_b32 s59, s47")
    e(f"s_mov_b32 s30, {W_E}")
    e("s_lshl_b32 s36, s2, 7")
    e(f"s_add_u32 s36, s36, {W_M}")
    if a.pretouch:
        assert SP == 1
        e("s_sub_u32 s37, s27, 28")
    e("s_cmp_lt_u32 s26, 2")
    e("s_waitcnt lgkmcnt(0)")
    e("s_mov_b64 s[44:45], s[4:5]")
    e("s_cbranch_scc0 L_norl")
    e("s_mov_b64 s[48:49], s[6:7]")
    for n in range(8):
        e(f"buffer_load_dwordx4 v[{16+4*n}:{19+4*n}], v7, s[44:47], {'s28' if n < 4 else 's29'} offen offset:{(n%4)*1024} {a.xnt}")
        if n == 0:
            e(f"buffer_load_dwordx4 v[48:51], v7, s[48:51], 0 offen {a.wrnt}")
            e(f"buffer_load_dwordx4 v[52:55], v7, s[48:51], 0 offen offset:1024 {a.wrnt}")
    g.lab("L_norl")
    if a.wsoff:
        e(f"s_add_u32 s56, s18, {a.wsoff}")
        e("s_addc_u32 s57, s19, 0")
    else:
        e("s_mov_b64 s[56:57], s[18:19]")
    e("s_load_dword s33, s[56:57], s30")
    if a.pretouch:
        e("s_load_dword s34, s[56:57], s36")
        e("s_cmp_lt_u32 s37, 4")
        e("s_cbranch_scc0 L_nopt")
        e("v_lshlrev_b32 v13, 7, v0")
        e(f"s_mov_b32 s37, {W_R}")
        e("buffer_load_dword v2, v13, s[56:59], s37 offen")
        g.lab("L_nopt")
    e("s_barrier")
    if a.sonly:
        if a.sonly > 1: e(f"s_sleep {a.sonly}")
        e("ds_write_b32 v3, v3 offset:4")
        e("s_branch L_diag")
    e("s_branch L_ctl")
    g.lab("L_cmp")
    def decode(t):
        e("s_mov_b64 s[24:25], 0")
        e("s_and_b32 s23, s21, 3")
        e("s_lshr_b32 s27, s21, 2")
        e(f"s_cmp_eq_u32 s20, {SP}")
        e(f"s_cbranch_scc1 L_special{t}")
        e(f"s_cmp_gt_u32 s20, {SP}")
        e("s_subb_u32 s22, s20, 0")
        e("s_cmp_lt_u32 s21, 12")
        e(f"s_cbranch_scc1 L_dec{t}")
        e("s_sub_u32 s27, s27, 1")
        e("s_cmp_ge_u32 s21, 20")
        e(f"s_cbranch_scc1 L_dec{t}")
        e("s_mov_b32 s27, 3")
        e("s_sub_u32 s23, s21, 12")
        e("s_mov_b32 s24, 1")
        e(f"s_branch L_dec{t}")
        g.lab(f"L_special{t}")
        e("s_mov_b32 s22, s27")
        e("s_mov_b32 s27, 7")
        e("s_cmp_ge_u32 s21, 28")
        e("s_cselect_b32 s25, 1, 0")
        g.lab(f"L_dec{t}")
        e("s_lshl3_add_u32 s22, s22, s27")
        e("s_and_b32 s41, s23, s24")
    decode("c")
    e("s_cmp_eq_u32 s25, 1")
    e("s_cbranch_scc1 L_end")
    e("v_lshrrev_b32 v5, 3, v0")
    e("v_lshrrev_b32 v2, 4, v0")
    e("v_lshl_add_u32 v1, v5, 1, v5") if False else None
    e("v_and_b32 v1, 3, v5")
    e("v_lshrrev_b32 v3, 5, v0")
    e("v_lshl_add_u32 v1, v3, 3, v1")
    e("v_lshlrev_b32 v3, 1, v2")
    e("v_xor_b32 v3, v3, v0")
    e("v_and_b32 v3, 7, v3")
    e("v_lshlrev_b32 v3, 4, v3")
    e("v_mul_u32_u24 v4, 7168, v1")
    e("v_add_u32 v4, v4, v3")
    e("v_lshl_add_u32 v5, v5, 11, v3")
    e("s_and_b32 s28, s3, 1")
    e("s_lshl_b32 s28, s28, 4")
    e("s_lshr_b32 s29, s3, 1")
    e("s_lshl_b32 s29, s29, 2")
    e("s_add_u32 s28, s28, s29")
    e("s_add_u32 s30, s24, 1")
    e("s_lshl_b32 s31, s24, 1")
    e("s_or_b32 s31, s31, 1")
    e("s_sub_u32 s32, 9, s24")
    e("s_lshr_b32 s33, s23, s30")
    e("s_and_b32 s34, s23, s31")
    e("s_lshl_b32 s35, s34, s32")
    e("s_add_u32 s36, s35, s28")
    e("s_mul_i32 s36, s36, 7168")
    e("s_lshl_b32 s37, s22, 7")
    e("s_add_u32 s36, s36, s37")
    if a.lin:
        e("v_lshlrev_b32 v4, 4, v0")
        e("v_mov_b32 v5, v4")
        e("s_lshl_b32 s36, s22, 17")
        e("s_add_u32 s37, s32, 7")
        e("s_lshl_b32 s37, s34, s37")
        e("s_add_u32 s36, s36, s37")
        e("s_lshl_b32 s37, s3, 10")
        e("s_add_u32 s36, s36, s37")
    e("s_lshl_b32 m0, s3, 10")
    e(f"s_mov_b32 s46, {WB}")
    e("s_mov_b32 s47, 0x20000")
    e("s_cmp_eq_u32 s33, 1")
    e("s_waitcnt lgkmcnt(0)")
    e("s_cselect_b32 s44, s10, s8")
    e("s_cselect_b32 s45, s11, s9")
    e(f"v_mov_b32 v13, {L_T}")
    DS = a.sdepth or max(2, (D+1)//2)
    e("s_cmp_eq_u32 s24, 1")
    e(f"s_cselect_b32 s43, {DS}, {D}")
    e("s_barrier")
    g.lab("L_b0")
    e(f"buffer_load_dwordx4 v4, s[44:47], s36 offen {NT} lds")
    e(f"s_add_u32 s36, s36, {4096 if a.lin else 32*7168}")
    e("s_add_u32 m0, m0, 4096")
    e("s_sub_u32 s43, s43, 1")
    e("s_cmp_lg_u32 s43, 0")
    e("s_cbranch_scc1 L_b0")
    e("s_cmp_eq_u32 s24, 1")
    e("s_cbranch_scc1 L_slow")

    def cload():
        e(f"buffer_load_dwordx4 v5, s[48:51], s39 offen {NT} lds")
        e(f"s_add_u32 s39, s39, {1024 if a.lin else 8*2048}")
        e("s_add_u32 m0, m0, 1024")

    def bphase(nb, d, tag):
        n1 = nb - a.tail*nb//16
        half = nb//2
        def bload():
            e(f"buffer_load_dwordx4 v4, s[44:47], s36 offen {NT} lds")
            e(f"s_add_u32 s36, s36, {4096 if a.lin else 32*7168}")
            e("s_add_u32 m0, m0, 4096")
        srd(e, 48, "s12", "s13", WB)
        e("s_lshr_b32 s38, s23, s24")
        e("s_lshl_b32 s38, s38, 2")
        e("s_add_u32 s38, s38, s3")
        e("s_lshl_b32 s39, s22, 17")
        e(f"s_lshl_b32 s40, s38, {13 if a.lin else 7}")
        e("s_add_u32 s39, s39, s40")
        e("s_lshl_b32 s42, s3, 13")
        e(f"s_add_u32 s42, s42, {L_C}")
        e("v_lshrrev_b32 v1, 5, v0")
        e("v_and_b32 v3, 31, v0")
        e("v_bfe_u32 v6, v0, 2, 3")
        e("v_lshlrev_b32 v7, 7, v6")
        e("v_lshl_add_u32 v7, v1, 10, v7")
        e("v_lshrrev_b32 v6, 1, v6")
        e("v_lshl_add_u32 v7, v6, 5, v7")
        e("v_and_b32 v6, 3, v0")
        e("v_lshl_add_u32 v7, v6, 3, v7")
        e("s_lshl_b32 s43, s3, 5")
        e("v_xor_b32 v6, s43, v7")
        e("v_add_u32 v7, s42, v7")
        e("v_and_b32 v8, 7, v0")
        e("v_bfe_u32 v9, v0, 3, 1")
        e(f"v_mul_u32_u24 v10, {XP}, v8")
        e("v_lshl_add_u32 v10, v2, 4, v10")
        e(f"v_mul_u32_u24 v11, {half*64}, v9")
        e("v_add_u32 v10, v10, v11")
        if nb == 8:
            e("s_and_b32 s43, s34, 1")
            e("s_lshl_b32 s43, s43, 9")
            e(f"s_add_u32 s43, s43, {L_X}")
            e("v_add_u32 v10, s43, v10")
        else:
            e(f"v_add_u32 v10, {L_X}, v10")
        e("s_lshl_b32 s60, s22, 3")
        e("s_lshl_b32 s52, s33, 2")
        e("s_add_u32 s52, s52, s60")
        e("s_add_u32 s52, s52, s34")
        e("s_lshl_b32 s52, s52, 11")
        e("s_lshl_b32 s53, s3, 9")
        e("s_add_u32 s52, s52, s53")
        e(f"s_add_u32 s56, s18, {a.wsoff}")
        e("s_addc_u32 s57, s19, 0")
        e(f"s_mov_b32 s58, {W_END}")
        e("s_mov_b32 s59, 0x20000")
        e("v_lshlrev_b32 v14, 6, v8")
        e("v_lshl_add_u32 v14, v2, 4, v14")
        if a.ptp:
            e("s_add_u32 s62, s56, s52")
            e("s_addc_u32 s63, s57, 0")
            for k in range(0, 512, a.ptp):
                e(f"s_load_dword s61, s[62:63], {k}")
        e(f"v_mov_b32 v15, {TAGM}")
        sk = g.u("L_noc")
        XF = 16; WF = 48
        def wread(k):
            e(f"ds_read_b64_tr_b16 v[{WF+4*k}:{WF+4*k+1}], v6 offset:{k*4096}")
            e(f"ds_read_b64_tr_b16 v[{WF+4*k+2}:{WF+4*k+3}], v6 offset:{k*4096+2048}")
        def mfma(k):
            acc = 112 if k < half else 116
            xf = XF + 4*(k % half)
            cin = "0" if k in (0, half) else f"v[{acc}:{acc+3}]"
            e(f"v_mfma_f32_16x16x32_bf16 v[{acc}:{acc+3}], v[{WF+4*k}:{WF+4*k+3}], v[{xf}:{xf+3}], {cin}")
        if a.late:
            e(f"s_mov_b32 s35, {nb - d}")
            e(f"s_bitcmp1_b32 {a.late}, s20")
            e(f"s_cbranch_scc1 L_bg{tag}")
        npre = min(a.npre * nb // 16, nb - d - 1)
        if npre > 0:
            e(f"s_mov_b32 s35, {npre}")
            g.lab(f"L_bp{tag}")
            e(f"s_waitcnt vmcnt({d-1})")
            bload()
            e("s_sub_u32 s35, s35, 1")
            e("s_cmp_lg_u32 s35, 0")
            e(f"s_cbranch_scc1 L_bp{tag}")
        e(f"s_mov_b32 s35, {nb - d - max(npre, 0)}")
        e(f"s_mov_b32 s37, {a.spin*8}")
        def check(back, out):
            e("s_waitcnt lgkmcnt(0)")
            e("v_readfirstlane_b32 s43, v12")
            e("s_sub_u32 s37, s37, 1")
            e(f"s_cbranch_scc1 {out}")
            e("s_cmp_eq_u32 s43, 0")
            e(f"s_cbranch_scc1 {back}")
        g.lab(f"L_bl{tag}")
        e("ds_read_b32 v12, v13 offset:4")
        e(f"s_waitcnt vmcnt({d-1})")
        bload()
        e("s_sub_u32 s35, s35, 1")
        e("s_cmp_eq_u32 s35, 0")
        e(f"s_cbranch_scc1 L_cl0{tag}")
        check(f"L_bl{tag}", f"L_bg{tag}")
        g.lab(f"L_bg{tag}")
        bload()
        e("s_sub_u32 s35, s35, 1")
        e("s_cmp_lg_u32 s35, 0")
        e(f"s_cbranch_scc1 L_bg{tag}")
        g.lab(f"L_cl0{tag}")
        e("s_mov_b32 m0, s42")
        ncp = a.cpre
        if nb == 8:
            e("s_cmp_eq_u32 s41, 1"); e(f"s_cbranch_scc1 {sk}f")
        early = min(ncp, d - (nb - n1))
        for j in range(max(early, 0)):
            e(f"s_waitcnt vmcnt({d-1})")
            cload()
        early = max(early, 0)
        g.stamp(1)
        if a.sonly:
            for j in range(early, ncp):
                e(f"s_waitcnt vmcnt({d-1})")
                cload()
            e(f"s_waitcnt vmcnt({ncp})")
            g.stamp(2)
            for j in range(ncp, 8): cload()
            e("s_branch L_diag")
        e(f"s_waitcnt vmcnt({nb - n1 + early})")
        if nb == 8:
            e(f"s_branch {sk}g")
            g.lab(f"{sk}f")
            if a.sonly: e("s_branch L_diag")
            e(f"s_waitcnt vmcnt({nb - n1})")
            g.lab(f"{sk}g")
        g.stamp(2)
        e("s_barrier")
        g.stamp(3)
        for k in range(n1): wread(k)
        mid = min(ncp, early + a.cmid)
        if nb == 8:
            e("s_cmp_eq_u32 s41, 1"); e(f"s_cbranch_scc1 {sk}h")
        for j in range(early, mid): cload()
        if nb == 8: g.lab(f"{sk}h")
        e("s_waitcnt lgkmcnt(0)")
        g.stamp(4)
        e("s_barrier")
        g.stamp(5)
        for f in range(half):
            e(f"ds_read_b128 v[{XF+4*f}:{XF+4*f+3}], v10 offset:{f*64}")
        e("ds_read_b32 v12, v13")
        nA = n1//2
        for k in range(nA):
            e(f"s_waitcnt lgkmcnt({max(half - k, 0)})")
            mfma(k)
        if nb == 8:
            e("s_cmp_eq_u32 s41, 1"); e(f"s_cbranch_scc1 {sk}d")
        for j in range(mid, ncp):
            e(f"s_waitcnt vmcnt({d-1})")
            cload()
        e(f"s_waitcnt vmcnt({ncp})")
        if nb == 8:
            e(f"s_branch {sk}e")
            g.lab(f"{sk}d")
            e("s_waitcnt vmcnt(0)")
            g.lab(f"{sk}e")
        e("s_waitcnt lgkmcnt(0)")
        e("s_barrier")
        for k in range(n1, nb): wread(k)
        if a.clate == 0:
            if nb == 8:
                e("s_cmp_eq_u32 s41, 1"); e(f"s_cbranch_scc1 {sk}i")
            for j in range(ncp, 8): cload()
            if nb == 8: g.lab(f"{sk}i")
        for k in range(nA, n1): mfma(k)
        for k in range(n1, nb):
            e(f"s_waitcnt lgkmcnt({2*(nb-1-k)})")
            mfma(k)

    bphase(16, D, "n")
    e("s_branch L_pub")
    g.lab("L_slow")
    bphase(8, DS, "s")
    g.lab("L_pub")
    e("s_lshl_b32 s62, s60, 11")
    e("s_lshl_b32 s53, s3, 7")
    e("s_add_u32 s62, s62, s53")
    e("s_add_u32 s63, s62, 8192")
    e("s_add_u32 s54, s62, 4096")
    e("s_add_u32 s55, s63, 4096")
    e("s_nop 1")
    for r in range(4):
        e(f"v_add_f32_dpp v{112+r}, v{116+r}, v{112+r} row_ror:8 row_mask:0xf bank_mask:0xf")
    e("s_mov_b32 exec_lo, 0x00ff00ff")
    e("s_mov_b32 exec_hi, 0x00ff00ff")
    for r in range(4):
        e(f"v_bfi_b32 v{112+r}, v15, v12, v{112+r}")
    e(f"buffer_store_dwordx4 v[112:115], v14, s[56:59], s52 offen {ST}")
    e("s_mov_b64 exec, -1")
    g.stamp(6)
    e("s_cmp_eq_u32 s41, 1")
    e("s_cbranch_scc1 L_cdone")
    NL = 8 - a.cpre if a.clate else 0
    if a.clate:
        for j in range(a.cpre, 8): cload()
    e("v_bfe_u32 v14, v0, 3, 2")
    e("v_lshlrev_b32 v14, 9, v14")
    e("v_lshl_add_u32 v14, v1, 6, v14")
    e("v_lshl_add_u32 v14, v8, 3, v14")
    e(f"v_mul_u32_u24 v16, {HP}, v8")
    e("v_lshl_add_u32 v16, v2, 4, v16")
    e(f"v_add_u32 v16, {L_H}, v16")
    e("s_lshl_b32 s60, s3, 1")
    e("v_add_u32 v17, s60, v1")
    e(f"v_mul_u32_u24 v17, {HP}, v17")
    e("v_bfe_u32 v18, v0, 4, 1")
    e("v_lshl_add_u32 v17, v18, 6, v17")
    e("v_bfe_u32 v18, v0, 1, 2")
    e("v_lshl_add_u32 v17, v18, 4, v17")
    e("v_lshl_add_u32 v17, v9, 3, v17")
    e("v_and_b32 v18, 1, v0")
    e("v_lshl_add_u32 v17, v18, 2, v17")
    e(f"v_add_u32 v17, {L_H}, v17")
    for tt in range(1, 4): e(f"v_xor_b32 v{36+tt}, {32*tt}, v7")
    e("s_mov_b32 s60, 229376")
    e("v_mul_lo_u32 v19, v8, s60")
    e("v_lshl_add_u32 v19, v9, 6, v19")
    e("v_lshl_add_u32 v19, v2, 4, v19")
    e(f"s_mul_i32 s52, s38, {2*7168}")
    e("s_lshl_b32 s53, s22, 7")
    e("s_add_u32 s52, s52, s53")
    e(f"s_add_u32 s52, s52, {W_Y}")
    e("s_add_u32 s53, s52, 7168")
    e(f"s_mov_b32 s61, {a.spin}")
    def gloads(slow):
        e(f"buffer_load_dwordx2 v[20:21], v14, s[56:59], s62 offen {LD}")
        e(f"buffer_load_dwordx2 v[22:23], v14, s[56:59], s62 offen offset:2048 {LD}")
        e(f"buffer_load_dwordx2 v[24:25], v14, s[56:59], s63 offen {LD}")
        e(f"buffer_load_dwordx2 v[26:27], v14, s[56:59], s63 offen offset:2048 {LD}")
        if slow:
            e(f"buffer_load_dwordx2 v[28:29], v14, s[56:59], s54 offen {LD}")
            e(f"buffer_load_dwordx2 v[30:31], v14, s[56:59], s54 offen offset:2048 {LD}")
            e(f"buffer_load_dwordx2 v[32:33], v14, s[56:59], s55 offen {LD}")
            e(f"buffer_load_dwordx2 v[34:35], v14, s[56:59], s55 offen offset:2048 {LD}")
    def creads():
        for ks in range(2):
            for tt in range(4):
                r = 48 + 16*ks + 4*tt
                av = 7 if tt == 0 else 36 + tt
                e(f"ds_read_b64_tr_b16 v[{r}:{r+1}], v{av} offset:{ks*4096}")
                e(f"ds_read_b64_tr_b16 v[{r+2}:{r+3}], v{av} offset:{ks*4096+2048}")
    def gather(slow):
        t = "s" if slow else "n"
        n = 8 if slow else 4
        if a.gsleep: e(f"s_sleep {a.gsleep}")
        else: e(f"s_waitcnt vmcnt({NL if a.gack else 1 + a.gearly})")
        g.stamp(7)
        gloads(slow)
        e(f"s_waitcnt vmcnt({n if NL else n+1})")
        g.stamp(11)
        creads()
        if a.diag and (not a.only or 12 in a.only):
            e(f"s_waitcnt vmcnt({n})")
            g.stamp(12)
            e(f"s_waitcnt vmcnt(0)")
            g.stamp(13)
        e(f"s_branch L_gc{t}")
        g.lab(f"L_g{t}")
        if a.gretry: e(f"s_sleep {a.gretry}")
        gloads(slow)
        g.lab(f"L_gc{t}")
        e("s_waitcnt vmcnt(0)")
        e("v_xor_b32 v18, v20, v12")
        for r in range(21, 20 + 2*n):
            e(f"v_bitop3_b32 v18, v18, v{r}, v12 bitop3:0xf6")
        e("v_and_b32 v18, v15, v18")
        e("v_cmp_ne_u32 vcc, 0, v18")
        e(f"s_cbranch_vccz L_gok{t}")
        e("s_sub_u32 s61, s61, 1")
        e("s_cmp_lg_u32 s61, 0")
        e(f"s_cbranch_scc1 L_g{t}")
        g.lab(f"L_gok{t}")
        if slow:
            e("v_pk_add_f32 v[20:21], v[20:21], v[28:29]")
            e("v_pk_add_f32 v[22:23], v[22:23], v[30:31]")
            e("v_pk_add_f32 v[24:25], v[24:25], v[32:33]")
            e("v_pk_add_f32 v[26:27], v[26:27], v[34:35]")
    e("s_cmp_eq_u32 s24, 1")
    e("s_cbranch_scc0 L_gnorm")
    gather(True)
    e("s_branch L_act")
    g.lab("L_gnorm")
    gather(False)
    g.lab("L_act")
    g.stamp(8)
    if a.diag: e(f"s_sub_u32 s84, {a.spin+1}, s61")
    e("v_add_f32 v20, v20, v22"); e("v_add_f32 v21, v21, v23")
    e("v_add_f32 v24, v24, v26"); e("v_add_f32 v25, v25, v27")
    e("v_cvt_pk_bf16_f32 v22, v20, v21")
    e("v_cvt_pk_bf16_f32 v26, v24, v25")
    e("v_lshlrev_b32 v20, 16, v22")
    e("v_and_b32 v21, 0xffff0000, v22")
    e("v_mul_f32 v28, 0xbfb8aa3b, v20")
    e("v_mul_f32 v29, 0xbfb8aa3b, v21")
    e("v_exp_f32 v28, v28")
    e("v_exp_f32 v29, v29")
    e("v_lshlrev_b32 v24, 16, v26")
    e("v_add_f32 v28, 1.0, v28")
    e("v_add_f32 v29, 1.0, v29")
    e("v_rcp_f32 v28, v28")
    e("v_rcp_f32 v29, v29")
    e("v_and_b32 v25, 0xffff0000, v26")
    e("v_mul_f32 v20, v20, v28")
    e("v_mul_f32 v21, v21, v29")
    e("v_cvt_pk_bf16_f32 v22, v20, v21")
    e("v_lshlrev_b32 v20, 16, v22")
    e("v_and_b32 v21, 0xffff0000, v22")
    e("v_mul_f32 v20, v20, v24")
    e("v_mul_f32 v21, v21, v25")
    e("v_cvt_pk_bf16_f32 v22, v20, v21")
    e("ds_write_b32 v17, v22")
    e("v_cmp_eq_u32 vcc, 1, v9")
    e("s_waitcnt lgkmcnt(0)")
    e("s_barrier")
    e("ds_read_b128 v[20:23], v16")
    e("ds_read_b128 v[24:27], v16 offset:64")
    e("s_waitcnt lgkmcnt(1)")
    for tt in range(4):
        e(f"v_mfma_f32_16x16x32_bf16 v[{80+4*tt}:{83+4*tt}], v[{48+4*tt}:{51+4*tt}], v[20:23], 0")
    e("s_waitcnt lgkmcnt(0)")
    for tt in range(4):
        e(f"v_mfma_f32_16x16x32_bf16 v[{80+4*tt}:{83+4*tt}], v[{64+4*tt}:{67+4*tt}], v[24:27], v[{80+4*tt}:{83+4*tt}]")
    e("s_nop 5")
    for r in range(4):
        e(f"v_cndmask_b32 v{80+r}, v{80+r}, v{84+r}, vcc")
    for r in range(4):
        e(f"v_bfi_b32 v{80+r}, v15, v12, v{80+r}")
    e(f"buffer_store_dwordx4 v[80:83], v19, s[56:59], s52 offen {ST}")
    for r in range(4):
        e(f"v_cndmask_b32 v{88+r}, v{88+r}, v{92+r}, vcc")
    for r in range(4):
        e(f"v_bfi_b32 v{88+r}, v15, v12, v{88+r}")
    e(f"buffer_store_dwordx4 v[88:91], v19, s[56:59], s53 offen {ST}")
    g.stamp(9)
    if a.rdelay < 0:
        e("s_waitcnt vmcnt(0)")
    e("s_barrier")
    g.lab("L_cdone")
    if a.diag:
        e("s_branch L_diag")
    e("s_endpgm")

    g.lab("L_ctl")
    g.stamp(1)
    e("s_mov_b32 s31, s27")
    decode("k")
    e("s_mov_b32 s27, s31")
    e("s_add_u32 s52, s56, s36")
    e("s_addc_u32 s53, s57, 0")
    if a.pty == 1:
        e(f"s_mul_i32 s54, s2, 7168")
        e(f"s_add_u32 s54, s54, {W_Y}")
        e("v_lshlrev_b32 v59, 7, v0")
        e("v_cmp_gt_u32 vcc, 56, v0")
        e("s_and_saveexec_b64 s[42:43], vcc")
        e(f"buffer_load_dword v58, v59, s[56:59], s54 offen {a.ptf}")
        e("s_mov_b64 exec, -1")
    e("s_lshr_b32 s37, s23, s24")
    e("s_and_b32 s37, s37, 1")
    e("s_lshl_b32 s37, s37, 10")
    e("v_add_u32 v84, s37, v7")
    for b in range(1, 8):
        e(f"v_add_u32 v{84+b}, {b*65536}, v84")
    e("s_waitcnt lgkmcnt(0)")
    e("s_add_u32 s33, s33, 1")
    e("v_mov_b32 v6, s33")
    e("s_cmp_lt_u32 s26, 2")
    e("s_cbranch_scc1 L_route")
    e("s_branch L_poll")
    g.lab("L_route")
    e("s_and_b32 s30, s27, 7")
    e("s_lshl_b32 s30, s30, 13")
    e(f"s_sub_u32 s30, {31 << 11}, s30")
    e("s_lshl_b32 s31, s27, 7")
    e(f"s_add_u32 s31, s31, {W_R}")
    for tk in range(4):
        for hlf in range(2):
            n = 2*tk + hlf
            e(f"s_waitcnt vmcnt({7 - n + (1 if n == 0 else 0)})")
            for r in range(4):
                src = "0" if (hlf == 0 and r == 0) else f"v{8+tk}"
                e(f"v_dot2_f32_bf16 v{8+tk}, v{16+4*n+r}, v{48+4*hlf+r}, {src}")
    g.stamp(12)
    e("s_nop 1")
    e("s_nop 0")
    e("v_permlane32_swap_b32 v8, v9")
    e("v_permlane32_swap_b32 v10, v11")
    e("v_bfe_u32 v13, v0, 4, 1")
    e("v_add_f32 v8, v8, v9")
    e("v_add_f32 v10, v10, v11")
    e("v_lshrrev_b32 v14, 5, v0")
    e("v_lshl_add_u32 v13, v13, 1, v14")
    e("v_permlane16_swap_b32 v8, v10")
    e("v_lshlrev_b32 v13, 11, v13")
    e("v_add_f32 v8, v8, v10")
    e("v_sub_u32 v12, s30, v13")
    for sh in (8, 4, 2, 1):
        e("s_nop 0" if sh == 8 else "s_nop 1")
        e(f"v_add_f32_dpp v8, v8, v8 row_ror:{sh} row_mask:0xf bank_mask:0xf")
    e("s_movk_i32 s32, 0x7ff")
    e("v_cvt_pk_bf16_f32 v9, v8, v8")
    e("v_cmp_u_f32 vcc, v8, v8")
    e("v_and_or_b32 v12, v6, s32, v12")
    e("v_ashrrev_i32 v10, 31, v9")
    e("v_or_b32 v10, 0x80000000, v10")
    e("v_xor_b32 v9, v9, v10")
    e("v_cndmask_b32 v9, v9, 0, vcc")
    e("v_and_b32 v9, 0xffff0000, v9")
    e("v_or_b32 v8, v9, v12")
    e("v_or_b32 v9, v9, v12")
    e("s_nop 1")
    e("v_permlane32_swap_b32 v8, v9")
    e("s_nop 0")
    e("v_max_u32 v8, v8, v9")
    e("v_max_u32 v9, v8, v9")
    e("s_nop 1")
    e("v_permlane16_swap_b32 v8, v9")
    e("v_mov_b32 v11, v6")
    e("v_max_u32 v10, v8, v9")
    e("s_mov_b64 exec, 1")
    e(f"buffer_store_dwordx2 v[10:11], v1, s[56:59], s31 offen {ST}")
    e("s_mov_b64 exec, -1")
    g.stamp(2)
    e("s_cmp_eq_u32 s25, 1")
    e("s_cbranch_scc0 L_poll")
    e("v_lshlrev_b32 v13, 7, v0")
    e(f"s_mov_b32 s30, {W_R}")
    e("v_and_b32 v14, 1, v0")
    e("v_lshlrev_b32 v92, 7, v14")
    for r in range(1, 4):
        e(f"v_add_u32 v{92+r}, {32*r}, v92")
    e("v_lshrrev_b32 v15, 1, v0")
    e("v_lshlrev_b32 v15, 7, v15")
    e("v_lshl_add_u32 v15, v14, 4, v15")
    e("s_sub_u32 s31, s21, 28")
    e("s_lshl_b32 s31, s31, 13")
    e(f"s_add_u32 s31, s31, {W_M}")
    e("s_add_u32 s32, s31, 4096")
    e(f"s_mov_b32 s34, {a.spin}")
    if a.agdelay < 0: e("s_waitcnt vmcnt(0)")
    elif a.agdelay: e(f"s_sleep {a.agdelay}")
    NP = a.npoll
    for k in range(NP-1):
        e(f"buffer_load_dwordx2 v[{100+2*k}:{101+2*k}], v13, s[56:59], s30 offen {LD}")
        if a.psleep: e(f"s_sleep {a.psleep}")
    g.lab("L_ag")
    for k in range(NP):
        kk = (k+NP-1) % NP
        e(f"buffer_load_dwordx2 v[{100+2*kk}:{101+2*kk}], v13, s[56:59], s30 offen {LD}")
        e(f"s_waitcnt vmcnt({NP-1})")
        e(f"v_cmp_ne_u32 vcc, v{101+2*k}, v6")
        e(f"v_mov_b32 v8, v{100+2*k}")
        e("s_cbranch_vccz L_agok")
        if a.psleep and NP > 1: e(f"s_sleep {a.psleep}")
    e("s_sub_u32 s34, s34, 1")
    e("s_cmp_lg_u32 s34, 0")
    e("s_cbranch_scc1 L_ag")
    g.lab("L_agok")
    g.stamp(11)
    if a.diag: e(f"s_sub_u32 s85, {a.spin+1}, s34")
    e("s_nop 0")
    e("v_max_u32_dpp v8, v8, v8 quad_perm:[1,0,3,2] row_mask:0xf bank_mask:0xf")
    e("s_nop 1")
    e("v_max_u32_dpp v8, v8, v8 quad_perm:[2,3,0,1] row_mask:0xf bank_mask:0xf")
    e("s_nop 1")
    e("v_max_u32_dpp v8, v8, v8 row_half_mirror row_mask:0xf bank_mask:0xf")
    e("v_xor_b32 v8, 0xf800, v8")
    for r in range(4):
        e(f"ds_bpermute_b32 v{96+r}, v{92+r}, v8")
    e("s_waitcnt lgkmcnt(0)")
    e(f"buffer_store_dwordx4 v[96:99], v15, s[56:59], s31 offen {ST}")
    e(f"buffer_store_dwordx4 v[96:99], v15, s[56:59], s32 offen {ST}")
    g.stamp(8)
    g.lab("L_poll")
    e(f"v_and_b32 v12, {TAGM}, v6")
    e("ds_write_b32 v3, v12")
    e(f"s_mov_b32 s34, {a.spin*4}")
    e("s_and_b32 s36, s33, 0x7ff")
    e("s_mov_b32 s37, s36")
    if a.freerun:
        e("s_not_b64 s[38:39], s[36:37]")
        for k in range(4): e(f"s_mov_b64 s[{MB+2*k}:{MB+2*k+1}], s[38:39]")
    g.lab("L_pl")
    e(f"s_load_dwordx8 s[{MB}:{MB+7}], s[52:53], 0 glc")
    if a.freerun: e(f"s_sleep {a.freerun}")
    else: e("s_waitcnt lgkmcnt(0)")
    for k in range(4): e(f"s_mov_b64 s[{CP+2*k}:{CP+2*k+1}], s[{MB+2*k}:{MB+2*k+1}]")
    e(f"s_xor_b64 s[38:39], s[{CP}:{CP+1}], s[36:37]")
    e(f"s_xor_b64 s[42:43], s[{CP+2}:{CP+3}], s[36:37]")
    e("s_or_b64 s[38:39], s[38:39], s[42:43]")
    e(f"s_xor_b64 s[42:43], s[{CP+4}:{CP+5}], s[36:37]")
    e("s_or_b64 s[38:39], s[38:39], s[42:43]")
    e(f"s_xor_b64 s[42:43], s[{CP+6}:{CP+7}], s[36:37]")
    e("s_or_b64 s[38:39], s[38:39], s[42:43]")
    e("s_or_b32 s38, s38, s39")
    e("s_and_b32 s38, s38, 0x7ff")
    e("s_cbranch_scc0 L_pok")
    e("s_sub_u32 s34, s34, 1")
    e("s_cmp_lg_u32 s34, 0")
    e("s_cbranch_scc1 L_pl")
    g.lab("L_pok")
    e("s_cmp_eq_u32 s25, 1")
    e("s_cbranch_scc1 L_nox")
    e(f"s_mov_b32 m0, {L_X}")
    for b in range(8):
        e(f"s_and_b32 s38, s{CP+b}, 0xf800")
        e(f"buffer_load_dwordx4 v{84+b}, s[44:47], s38 offen {a.xsnt} lds")
        if b < 7:
            e(f"s_add_u32 m0, m0, {XP}")
    e("ds_write_b32 v3, v3 offset:4")
    g.stamp(3)
    e("s_barrier")
    g.lab("L_nox")
    e("s_lshr_b32 s38, s2, 5")
    e("s_mov_b32 m0, s38")
    e("s_lshl_b32 s38, s38, 16")
    e(f"s_movrels_b32 s40, s{CP}")
    e("s_and_b32 s39, s40, 0xf800")
    e("s_add_u32 s39, s39, s38")
    e("s_and_b32 s38, s2, 31")
    e("s_lshl_b32 s38, s38, 6")
    e("s_add_u32 s39, s39, s38")
    e("v_and_b32 v8, 7, v0")
    e("v_lshlrev_b32 v8, 3, v8")
    e("v_bfe_u32 v9, v0, 4, 1")
    e("v_lshl_add_u32 v8, v9, 2, v8")
    e("v_lshrrev_b32 v9, 5, v0")
    e("v_lshl_add_u32 v8, v9, 1, v8")
    e("s_cmp_eq_u32 s25, 1")
    e("s_cbranch_scc1 L_nobar")
    e("s_waitcnt vmcnt(0) lgkmcnt(0)")
    g.stamp(4)
    e("s_barrier")
    e("s_barrier")
    g.lab("L_nobar")
    e(f"buffer_load_ushort v10, v8, s[44:47], s39 offen {a.xsnt}")
    e(f"s_mul_i32 s54, s2, 7168")
    e(f"s_add_u32 s54, s54, {W_Y}")
    if a.pty == 2:
        e("v_lshlrev_b32 v59, 7, v0")
        e("v_cmp_gt_u32 vcc, 56, v0")
        e("s_and_saveexec_b64 s[42:43], vcc")
        e(f"buffer_load_dword v58, v59, s[56:59], s54 offen {a.ptf}")
        e("s_mov_b64 exec, -1")
    srd(e, 48, "s14", "s15", XBYTES)
    e("s_cmp_lt_u32 s26, 2")
    e("s_cbranch_scc0 L_nocopy")
    e("s_lshr_b32 m0, s27, 3")
    e("s_and_b32 s30, s27, 7")
    e(f"s_movrels_b32 s31, s{CP}")
    e("s_lshl_b32 s30, s30, 2")
    e("s_bfe_u32 s31, s31, 0x5000b")
    e("s_sub_u32 s31, s31, s30")
    e("s_mov_b32 s32, 0x7f807f80")
    e("s_mov_b32 s35, 0x00400040")
    for tk in range(4):
        e(f"s_cmp_eq_u32 s31, {tk}")
        e(f"s_cbranch_scc1 L_cp{tk}")
        for n in (2*tk, 2*tk+1):
            for r in range(4):
                v = 16+4*n+r
                e(f"v_and_b32 v48, s32, v{v}")
                e("v_add_u32 v48, 0x00800080, v48")
                e("v_lshrrev_b32 v48, 9, v48")
                e(f"v_and_or_b32 v{v}, v48, s35, v{v}")
            e(f"buffer_store_dwordx4 v[{16+4*n}:{19+4*n}], v7, s[48:51], {'s28' if n < 4 else 's29'} offen offset:{(n%4)*1024} {a.ost}")
        g.lab(f"L_cp{tk}")
    g.lab("L_nocopy")
    e("v_mov_b32 v11, s40")
    e("v_ashrrev_i32 v13, 31, v11")
    e("v_not_b32 v13, v13")
    e("v_or_b32 v13, 0x80000000, v13")
    e("v_xor_b32 v11, v11, v13")
    e("v_and_b32 v11, 0xffff0000, v11")
    e("v_mul_f32 v11, 0xbfb8aa3b, v11")
    e("v_exp_f32 v11, v11")
    e(f"s_mul_i32 s30, s2, 7168")
    e("v_add_f32 v11, 1.0, v11")
    e("v_rcp_f32 v11, v11")
    e(f"s_add_u32 s30, s30, {W_Y}")
    e("v_cvt_pk_bf16_f32 v11, v11, v11")
    e("s_add_u32 s31, s30, 4096")
    e("v_and_b32 v11, 0xffff0000, v11")
    e("s_or_b32 s41, s41, s25")
    e("s_cmp_eq_u32 s41, 1")
    e("s_cbranch_scc1 L_hint")
    e("s_barrier")
    e("s_barrier")
    if a.rdelay > 0: e(f"s_sleep {a.rdelay}")
    e("s_branch L_red")
    g.lab("L_hint")
    e(f"s_add_u32 s32, s30, {a.hintg*128}")
    e("s_add_u32 s52, s56, s32")
    e("s_addc_u32 s53, s57, 0")
    e(f"s_mov_b32 s34, {a.spin}")
    e(f"s_and_b32 s36, s33, {TAGM}")
    g.lab("L_hl")
    e("s_load_dword s35, s[52:53], 0 glc")
    e("s_waitcnt lgkmcnt(0)")
    e(f"s_and_b32 s35, s35, {TAGM}")
    e("s_cmp_eq_u32 s35, s36")
    e("s_cbranch_scc1 L_red")
    e("s_sub_u32 s34, s34, 1")
    e("s_cmp_lg_u32 s34, 0")
    e("s_cbranch_scc1 L_hl")
    g.lab("L_red")
    g.stamp(5)
    e(f"s_mov_b32 s34, {a.spin}")
    if a.pend:
        def rload(n):
            so = "s30" if n < 4 else "s31"
            e(f"buffer_load_dwordx4 v[{16+4*n}:{19+4*n}], v7, s[56:59], {so} offen offset:{(n%4)*1024} {LD}")
        def rcheck(n):
            v = 16+4*n
            e(f"v_xor_b32 v9, v{v}, v12")
            for r in range(1, 4): e(f"v_bitop3_b32 v9, v9, v{v+r}, v12 bitop3:0xf6")
            e(f"v_and_b32 v9, {TAGM}, v9")
            e("v_cmp_ne_u32 vcc, 0, v9")
        for n in range(7): rload(n)
        e("s_mov_b32 s35, 0")
        for n in range(7):
            e(f"s_waitcnt vmcnt({6-n})")
            rcheck(n)
            e("s_cmp_lg_u64 vcc, 0")
            e(f"s_cselect_b32 s32, {1 << n}, 0")
            e("s_or_b32 s35, s35, s32")
        e("s_cbranch_scc0 L_rsum")
        g.lab("L_rl")
        if a.rretry: e(f"s_sleep {a.rretry}")
        for n in range(7):
            e(f"s_bitcmp1_b32 s35, {n}")
            e(f"s_cbranch_scc0 L_rs{n}")
            rload(n)
            g.lab(f"L_rs{n}")
        e("s_waitcnt vmcnt(0)")
        for n in range(7):
            e(f"s_bitcmp1_b32 s35, {n}")
            e(f"s_cbranch_scc0 L_rt{n}")
            rcheck(n)
            e(f"s_cbranch_vccnz L_rt{n}")
            e(f"s_bitset0_b32 s35, {n}")
            g.lab(f"L_rt{n}")
        e("s_cmp_eq_u32 s35, 0")
        e("s_cbranch_scc1 L_rsum")
        e("s_sub_u32 s34, s34, 1")
        e("s_cmp_lg_u32 s34, 0")
        e("s_cbranch_scc1 L_rl")
        g.lab("L_rsum")
        for h in (0, 2):
            e(f"v_pk_add_f32 v[{16+h}:{17+h}], v[{16+h}:{17+h}], v[{20+h}:{21+h}]")
            e(f"v_pk_add_f32 v[{24+h}:{25+h}], v[{24+h}:{25+h}], v[{28+h}:{29+h}]")
            e(f"v_pk_add_f32 v[{32+h}:{33+h}], v[{32+h}:{33+h}], v[{36+h}:{37+h}]")
        for h in (0, 2):
            e(f"v_pk_add_f32 v[{16+h}:{17+h}], v[{16+h}:{17+h}], v[{24+h}:{25+h}]")
            e(f"v_pk_add_f32 v[{32+h}:{33+h}], v[{32+h}:{33+h}], v[{40+h}:{41+h}]")
        for h in (0, 2):
            e(f"v_pk_add_f32 v[{16+h}:{17+h}], v[{16+h}:{17+h}], v[{32+h}:{33+h}]")
        e("s_nop 0")
    else:
        g.lab("L_rl")
        for n in range(7):
            so = "s30" if n < 4 else "s31"
            e(f"buffer_load_dwordx4 v[{16+4*n}:{19+4*n}], v7, s[56:59], {so} offen offset:{(n%4)*1024} {LD}")
        for n in range(7):
            e(f"s_waitcnt vmcnt({6-n})")
            for r in range(4):
                v = 16+4*n+r
                if n == 0 and r == 0: e(f"v_xor_b32 v9, v{v}, v12")
                else: e(f"v_bitop3_b32 v9, v9, v{v}, v12 bitop3:0xf6")
            if n:
                e(f"v_pk_add_f32 v[16:17], v[16:17], v[{16+4*n}:{17+4*n}]")
                e(f"v_pk_add_f32 v[18:19], v[18:19], v[{18+4*n}:{19+4*n}]")
        e(f"v_and_b32 v9, {TAGM}, v9")
        e("v_cmp_ne_u32 vcc, 0, v9")
        e("s_cbranch_vccz L_rok")
        e("s_sub_u32 s34, s34, 1")
        e("s_cmp_lg_u32 s34, 0")
        e("s_cbranch_scc1 L_rl")
    g.lab("L_rok")
    g.stamp(6)
    if a.diag: e(f"s_sub_u32 s84, {a.spin+1}, s34")
    e("s_nop 0")
    e("v_permlane32_swap_b32 v16, v17")
    e("v_permlane32_swap_b32 v18, v19")
    e("v_lshlrev_b32 v10, 16, v10")
    e("v_add_f32 v16, v16, v17")
    e("v_add_f32 v18, v18, v19")
    e("s_nop 1")
    e("v_permlane16_swap_b32 v16, v18")
    e("s_nop 0")
    e("v_add_f32 v16, v16, v18")
    e("s_nop 1")
    e("v_add_f32_dpp v16, v16, v16 row_ror:8 row_mask:0xf bank_mask:0xf")
    e("s_mov_b32 exec_lo, 0x00ff00ff")
    e("s_mov_b32 exec_hi, 0x00ff00ff")
    e("v_cvt_pk_bf16_f32 v16, v16, v16")
    e("v_and_b32 v16, 0xffff0000, v16")
    e("v_mul_f32 v16, v16, v11")
    e("v_cvt_pk_bf16_f32 v16, v16, v16")
    e("v_and_b32 v16, 0xffff0000, v16")
    e("v_fma_f32 v16, v10, 0, v16")
    e("v_add_f32 v16, v10, v16")
    e("v_cvt_pk_bf16_f32 v16, v16, v16")
    e(f"buffer_store_short v16, v8, s[48:51], s39 offen {a.ost2}")
    e(f"s_cmp_eq_u32 s2, {28*8 + SP}")
    e("s_cbranch_scc0 L_nobump")
    e("s_mov_b64 exec, 1")
    e(f"s_mov_b32 s30, {W_E}")
    e("buffer_store_dword v6, v1, s[56:59], s30 offen sc1")
    g.lab("L_nobump")
    g.stamp(7)
    if a.hold:
        e("s_cmp_eq_u32 s2, 1")
        e("s_cbranch_scc0 L_end")
        g.lab("L_hold")
        e("s_memrealtime s[68:69]")
        e("s_waitcnt lgkmcnt(0)")
        e("s_sub_u32 s68, s68, s86")
        e(f"s_cmp_lt_u32 s68, {a.hold}")
        e("s_cbranch_scc1 L_hold")
    if a.diag:
        g.lab("L_diag")
        e("s_waitcnt vmcnt(0) lgkmcnt(0)")
        g.stamp(10)
        e("s_mov_b64 exec, 1")
        e(f"s_add_u32 s56, s18, {W_DIAG}")
        e("s_addc_u32 s57, s19, 0")
        e("s_mov_b32 s58, 0x100000")
        e("s_mov_b32 s59, 0x20000")
        e("s_mul_i32 s30, s2, 5"); e("s_add_u32 s30, s30, s3"); e("s_lshl_b32 s30, s30, 6")
        e("v_mov_b32 v1, 0")
        e("s_mov_b32 s70, s86")
        for k in range(16):
            e(f"v_mov_b32 v2, s{70+k}")
            e(f"buffer_store_dword v2, v1, s[56:59], s30 offen offset:{4*k}")
    g.lab("L_end")
    e("s_endpgm")
    g.lab("L_code_end")

    hdr = open("standalone__moe_arch_mod__sampling.s.ref").read().split("; Override launch")[0] if not a.nohdr else ""
    src = hdr + f"; @launch grid=(256,1,1) block=(320,1,1) lds={a.lds or L_END}\n"
    ALIGN = ".p2align 8" if not a.align else ".p2align 12" + (f"\n.fill {(4096-768)//4}, 4, 0xbf810000\n.p2align 8" if a.align == 2 else "")
    src += f""".amdgcn_target "amdgcn-amd-amdhsa--gfx950"
.text
.globl {KN}
{ALIGN}
.type {KN},@function
{KN}:
""" + "\n".join(x for x in g.L if x) + f"""
.section .rodata,"a"
.p2align 6
.amdhsa_kernel {KN}
  .amdhsa_next_free_vgpr {a.vgpr}
  .amdhsa_next_free_sgpr 96
  .amdhsa_accum_offset {min(a.vgpr,256)}
  .amdhsa_group_segment_fixed_size 0
  .amdhsa_kernarg_size 64
  .amdhsa_user_sgpr_count 2
  .amdhsa_user_sgpr_kernarg_segment_ptr 1
  .amdhsa_system_sgpr_workgroup_id_x 1
  .amdhsa_float_denorm_mode_32 3
.end_amdhsa_kernel
"""
    return src

def parse(argv):
    p = argparse.ArgumentParser()
    p.add_argument("-o", default="/dev/stdout")
    for k, v in dict(diag=0, depth=5, sdepth=0, spin=20000, wsoff=0, nohdr=1, hold=0, special=1, rbar=1, lds=0, vgpr=120,
                     tail=4, c1=4, gearly=0, rdelay=-1, agdelay=-1, freerun=1, pretouch=1, hintg=24, cmid=2, pend=1, cpace=8, npoll=1, psleep=0, gack=1, gsleep=0, gretry=0, rretry=0, ptp=0, cpre=5, npre=4, clate=1, pty=0, ipf=1, sonly=0, lin=0, late=0, align=0).items():
        p.add_argument("--" + k, type=int, default=v)
    for k, v in dict(nt="nt", st="sc1", ld="sc1", ost="", ost2="", xnt="nt", wrnt="", xsnt="", ptf="", ipff="").items():
        p.add_argument("--" + k, default=v)
    p.add_argument("--only", default="")
    a = p.parse_args(argv)
    for k in ("nt", "st", "ld", "ost", "ost2", "xnt", "wrnt", "xsnt", "ptf", "ipff"):
        setattr(a, k, getattr(a, k).replace("+", " ").replace("none", ""))
    a.only = [int(x) for x in a.only.split(",") if x]
    return a

if __name__ == "__main__":
    a = parse(sys.argv[1:])
    open(a.o, "w").write(gen(a))
```

```python
import sys, argparse

KN = "standalone__moe_arch_mod__sampling_kernel"
WB = 1024*3584*2
XBYTES = 8*32*1024*2

L_B = 0
L_C = 65536
L_X = 98304
XP = 1056
L_H = L_X + 8*XP
HP = 272
L_T = L_H + 8*HP
L_F = L_T + 4
L_END = L_T + 64

W_P = 0
YS = 28*128
W_P2 = 56*8*2048
W_Y = 2*W_P2
W_X = W_Y + 256*YS
W_R = W_X + 2048
W_M = W_R + 64*128
W_E = W_M + 256*128
W_S = W_E + 256
W_END = W_S + 1024
W_DIAG = 4 << 20

TAGM = 0x3ff

class G:
    def __init__(s, a):
        s.a = a; s.L = []; s.uid = 0
    def e(s, t): s.L.append("    " + t)
    def lab(s, t): s.L.append(t + ":")
    def u(s, p):
        s.uid += 1; return f"{p}_{s.uid}"
    def stamp(s, k, wait=True):
        if s.a.diag and (k == 0 or not s.a.only or k in s.a.only):
            if not wait:
                s.e("s_memrealtime s[86:87]"); return
            s.e("s_memrealtime s[68:69]")
            s.e("s_waitcnt lgkmcnt(0)")
            s.e(f"s_mov_b32 s{70+k}, s68")

def srd(e, r, lo, hi, n):
    e(f"s_mov_b32 s{r}, {lo}"); e(f"s_mov_b32 s{r+1}, {hi}"); e(f"s_mov_b32 s{r+2}, {n}"); e(f"s_mov_b32 s{r+3}, 0x20000")

def gen(a):
    g = G(a); e = g.e; D = a.depth
    NT = a.nt; ST = a.st; LD = a.ld
    SP = a.special
    PT = a.pretouch + (a.pty == 1)
    MB = 88
    CP = 60
    g.stamp(0, wait=False)
    if (a.hold or a.span) and not a.diag: e("s_memrealtime s[86:87]")
    e("s_load_dwordx16 s[4:19], s[0:1], 0")
    if a.ipf:
        e("s_getpc_b64 s[20:21]")
        g.lab("L_pf_base")
        e("v_lshlrev_b32 v7, 7, v0")
        e("v_cmp_gt_u32 vcc, L_code_end-L_pf_base, v7")
        e("s_and_saveexec_b64 s[22:23], vcc")
        e("s_cbranch_execz L_ipf2")
        if a.ipf < 32:
            e(f"s_cmp_ge_u32 s2, {8*a.ipf}")
            e("s_cbranch_scc1 L_ipf2")
        e(f"global_load_dword v119, v7, s[20:21] {a.ipff}")
        g.lab("L_ipf2")
        e("s_mov_b64 exec, s[22:23]")
    e("v_readfirstlane_b32 s3, v0")
    e("v_and_b32 v0, 63, v0")
    e("s_cmp_ge_u32 s2, 256")
    e("s_cbranch_scc1 L_end")
    if a.diag:
        for k in range(1, 16): e(f"s_mov_b32 s{70+k}, 0")
    e("s_and_b32 s20, s2, 7")
    e("s_lshr_b32 s21, s2, 3")
    e("s_lshr_b32 s3, s3, 6")
    e("s_cmp_eq_u32 s3, 4")
    e("s_cbranch_scc0 L_cmp")
    e("s_setprio 3")
    e(f"s_sub_u32 s26, s20, {a.rcls}")
    e("s_lshl_b32 s27, s26, 5")
    e("s_add_u32 s27, s27, s21")
    e("v_lshlrev_b32 v7, 4, v0")
    e("s_lshl_b32 s28, s27, 13")
    e("s_add_u32 s29, s28, 4096")
    e("v_mov_b32 v1, 0")
    e(f"v_mov_b32 v3, {L_T}")
    e("v_mov_b32 v2, 0")
    e("ds_write_b32 v3, v1 offset:4")
    e("ds_write2_b32 v3, v1, v2 offset0:2 offset1:3")
    e(f"s_mov_b32 s46, {XBYTES}")
    e("s_mov_b32 s47, 0x20000")
    e("s_movk_i32 s50, 2048")
    e("s_mov_b32 s51, s47")
    e(f"s_mov_b32 s58, {W_END}")
    e("s_mov_b32 s59, s47")
    e(f"s_mov_b32 s30, {W_E}")
    e("s_lshl_b32 s36, s2, 7")
    e(f"s_add_u32 s36, s36, {W_M}")
    if a.pretouch:
        e(f"s_sub_u32 s37, s2, {28*8 + SP}")
        e("s_and_b32 s37, s37, 0xffe7")
    e("s_cmp_lt_u32 s26, 2")
    e("s_waitcnt lgkmcnt(0)")
    e("s_mov_b64 s[44:45], s[4:5]")
    e("s_cbranch_scc0 L_norl")
    e("s_mov_b64 s[48:49], s[6:7]")
    for n in range(8):
        e(f"buffer_load_dwordx4 v[{16+4*n}:{19+4*n}], v7, s[44:47], {'s28' if n < 4 else 's29'} offen offset:{(n%4)*1024} {a.xnt}")
        if n == 0:
            e(f"buffer_load_dwordx4 v[48:51], v7, s[48:51], 0 offen {a.wrnt}")
            e(f"buffer_load_dwordx4 v[52:55], v7, s[48:51], 0 offen offset:1024 {a.wrnt}")
    g.lab("L_norl")
    if a.wsoff:
        e(f"s_add_u32 s56, s18, {a.wsoff}")
        e("s_addc_u32 s57, s19, 0")
    else:
        e("s_mov_b64 s[56:57], s[18:19]")
    e("s_load_dword s33, s[56:57], s30")
    if a.mark:
        e("s_add_u32 s30, s30, 128")
        e("s_load_dword s35, s[56:57], s30")
    if a.pretouch:
        e("s_load_dword s34, s[56:57], s36")
        e("s_cmp_eq_u32 s37, 0")
        e("s_cbranch_scc0 L_nopt")
        e("v_lshlrev_b32 v13, 7, v0")
        e(f"s_mov_b32 s37, {W_R}")
        e("buffer_load_dword v2, v13, s[56:59], s37 offen")
        g.lab("L_nopt")
    e("s_barrier")
    if a.sonly:
        if a.sonly > 2: e(f"s_sleep {a.sonly}")
        if a.sonly > 1: e("ds_write_b32 v3, v3 offset:4")
        e("s_branch L_diag")
    e("s_branch L_ctl")
    g.lab("L_cmp")
    if a.t0: e("s_memrealtime s[88:89]")
    def decode(t, t0, t1, t2):
        ty = {}
        for k, c in enumerate(a.qcls): ty[c] = k
        for k, c in enumerate(a.tcls): ty[c] = 4 + k
        ty[SP] = 8 + 3
        TY = sum(v << (4*c) for c, v in ty.items())
        e("s_lshl_b32 s22, s20, 2")
        e(f"s_lshr_b32 s22, {TY:#x}, s22")
        e(f"s_and_b32 s{t0}, s22, 3")
        e("s_mov_b64 s[24:25], 0")
        e("s_lshr_b32 s23, s21, 3")
        e(f"s_lshl2_add_u32 s{t2}, s{t0}, s23")
        e("s_and_b32 s23, s21, 7")
        e(f"s_and_b32 s{t1}, s22, 12")
        e(f"s_cbranch_scc0 L_dn{t}")
        e("s_bitcmp1_b32 s22, 2")
        e(f"s_cselect_b32 s{t1}, 24, 12")
        e(f"s_sub_u32 s23, s21, s{t1}")
        e(f"s_cbranch_scc1 L_ds{t}")
        e("s_lshr_b32 s25, s23, 4")
        e(f"s_lshr_b32 s{t2}, s23, 3")
        e(f"s_add_u32 s{t2}, s{t2}, s{t0}")
        e(f"s_add_u32 s{t2}, s{t2}, 16")
        e("s_and_b32 s23, s23, 7")
        g.lab(f"L_dn{t}")
        e(f"s_add_u32 s22, s{t2}, 2")
        e("s_mul_i32 s22, s22, 43")
        e("s_lshr_b32 s22, s22, 7")
        e(f"s_add_u32 s22, s22, s{t2}")
        e(f"s_branch L_dec{t}")
        g.lab(f"L_ds{t}")
        e("s_cmp_ge_u32 s21, 12")
        e(f"s_cselect_b32 s{t1}, 12, 0")
        e(f"s_addc_u32 s{t2}, s{t0}, s{t0}")
        e(f"s_sub_u32 s23, s21, s{t1}")
        e(f"s_lshl2_add_u32 s22, s{t2}, 1")
        e("s_mov_b32 s24, 1")
        g.lab(f"L_dec{t}")
        e("s_cmp_ge_u32 s23, 4")
        e(f"s_cselect_b32 s{t1}, 4, 0")
        e("s_cselect_b32 s24, s24, 0")
        e("s_addc_u32 s22, s22, s22")
        e(f"s_sub_u32 s23, s23, s{t1}")
        e("s_and_b32 s41, s23, s24")
    decode("c", 27, 28, 29)
    e("s_cmp_eq_u32 s25, 1")
    e("s_cbranch_scc1 L_end")
    e("v_lshrrev_b32 v5, 3, v0")
    e("v_lshrrev_b32 v2, 4, v0")
    e("v_lshl_add_u32 v1, v5, 1, v5") if False else None
    e("v_and_b32 v1, 3, v5")
    e("v_lshrrev_b32 v3, 5, v0")
    e("v_lshl_add_u32 v1, v3, 3, v1")
    e("v_lshlrev_b32 v3, 1, v2")
    e("v_xor_b32 v3, v3, v0")
    e("v_and_b32 v3, 7, v3")
    e("v_lshlrev_b32 v3, 4, v3")
    e("v_mul_u32_u24 v4, 7168, v1")
    e("v_add_u32 v4, v4, v3")
    e("v_lshl_add_u32 v5, v5, 11, v3")
    e("s_and_b32 s28, s3, 1")
    e("s_lshl_b32 s28, s28, 4")
    e("s_lshr_b32 s29, s3, 1")
    e("s_lshl_b32 s29, s29, 2")
    e("s_add_u32 s28, s28, s29")
    e("s_add_u32 s30, s24, 1")
    e("s_lshl_b32 s31, s24, 1")
    e("s_or_b32 s31, s31, 1")
    e("s_sub_u32 s32, 9, s24")
    e("s_lshr_b32 s33, s23, s30")
    e("s_and_b32 s34, s23, s31")
    e("s_lshl_b32 s35, s34, s32")
    e("s_add_u32 s36, s35, s28")
    e("s_mul_i32 s36, s36, 7168")
    e("s_lshl_b32 s37, s22, 7")
    e("s_add_u32 s36, s36, s37")
    ROT = a.rotn or a.rots
    def rot(r, t):
        e("s_cmp_eq_u32 s24, 1")
        e(f"s_cselect_b32 s{r}, {a.rots:#x}, s{r}")
        e(f"s_lshl_b32 s{t}, s23, 2")
        e(f"s_lshr_b32 s{r}, s{r}, s{t}")
        e(f"s_and_b32 s{r}, s{r}, 15")
    def wrap():
        if ROT:
            e("s_cmp_eq_u32 s36, s27")
            e("s_cselect_b32 s36, s26, s36")
    if ROT:
        e("s_mov_b32 s26, s36")
        e("s_lshl_b32 s27, 7168, s32")
        e("s_add_u32 s27, s27, s36")
        e(f"s_mov_b32 s37, {a.rotn:#x}")
        rot(37, 35)
        e(f"s_mul_i32 s37, s37, {32*7168}")
        e("s_add_u32 s36, s36, s37")
    if a.lin:
        e("v_lshlrev_b32 v4, 4, v0")
        e("v_mov_b32 v5, v4")
        e("s_lshl_b32 s36, s22, 17")
        e("s_add_u32 s37, s32, 7")
        e("s_lshl_b32 s37, s34, s37")
        e("s_add_u32 s36, s36, s37")
        e("s_lshl_b32 s37, s3, 10")
        e("s_add_u32 s36, s36, s37")
    e("s_lshl_b32 m0, s3, 10")
    e(f"s_mov_b32 s46, {WB}")
    e("s_mov_b32 s47, 0x20000")
    e("s_cmp_eq_u32 s33, 1")
    e("s_waitcnt lgkmcnt(0)")
    if a.t0: e("s_memrealtime s[90:91]")
    e("s_cselect_b32 s44, s10, s8")
    e("s_cselect_b32 s45, s11, s9")
    e(f"v_mov_b32 v13, {L_T}")
    DS = a.sdepth or max(2, (D+1)//2)
    e("s_cmp_eq_u32 s24, 1")
    D0 = max(a.d0, D); DS0 = max(a.sd0, DS)
    DF = min(a.df or 99, DS0, D0) if a.df else 0
    if DF: e(f"s_mov_b32 s43, {DF}")
    else: e(f"s_cselect_b32 s43, {DS0}, {D0}")
    e("s_barrier")
    if a.t0: e("s_memrealtime s[92:93]")
    g.lab("L_b0")
    e(f"buffer_load_dwordx4 v4, s[44:47], s36 offen {NT} lds")
    e(f"s_add_u32 s36, s36, {4096 if a.lin else 32*7168}")
    e("s_add_u32 m0, m0, 4096")
    wrap()
    e("s_sub_u32 s43, s43, 1")
    e("s_cmp_lg_u32 s43, 0")
    e("s_cbranch_scc1 L_b0")
    if a.t0:
        e("s_memrealtime s[94:95]")
        e("s_waitcnt lgkmcnt(0)")
        e("s_mov_b32 s74, s88"); e("s_mov_b32 s75, s90"); e("s_mov_b32 s76, s92"); e("s_mov_b32 s77, s94")
    e("s_cmp_eq_u32 s24, 1")
    e("s_cbranch_scc1 L_slow")

    def cload():
        e(f"buffer_load_dwordx4 v5, s[48:51], s39 offen {NT} lds")
        e("s_add_u32 m0, m0, 1024")
        e(f"s_add_u32 s39, s39, {1024 if a.lin else 8*2048}")

    TR = [4, 6, 8, 10, 14, 16, 28, 30, 32, 34, 52, 54, 60, 62, 64, 66, 68, 70, 72, 74, 76, 78, 80, 82]
    def bphase(nb, d, tag, d0):
        n1 = nb - a.tail*nb//16
        half = nb//2
        def bload():
            e(f"buffer_load_dwordx4 v4, s[44:47], s36 offen {NT} lds")
            e("s_add_u32 m0, m0, 4096")
            e(f"s_add_u32 s36, s36, {4096 if a.lin else 32*7168}")
            wrap()
        srd(e, 48, "s12", "s13", WB)
        e("s_lshr_b32 s38, s23, s24")
        e("s_and_b32 s40, s22, 1")
        e("s_lshl2_add_u32 s40, s40, s38")
        e("s_lshr_b32 s38, s22, 1")
        e("s_lshr_b32 s39, s3, 1")
        e("s_lshl1_add_u32 s39, s38, s39")
        e("s_lshl_b32 s39, s39, 17")
        e("s_and_b32 s42, s3, 1")
        e("s_lshl1_add_u32 s42, s40, s42")
        e("s_lshl_b32 s42, s42, 7")
        e("s_add_u32 s39, s39, s42")
        e("s_lshl_b32 s42, s3, 13")
        e(f"s_add_u32 s42, s42, {L_C}")
        e("v_lshrrev_b32 v1, 5, v0")
        e("v_and_b32 v3, 31, v0")
        e("v_bfe_u32 v6, v0, 2, 3")
        e("v_lshlrev_b32 v7, 7, v6")
        e("v_lshl_add_u32 v7, v1, 10, v7")
        e("v_lshrrev_b32 v6, 1, v6")
        e("v_lshl_add_u32 v7, v6, 5, v7")
        e("v_and_b32 v6, 3, v0")
        e("v_lshl_add_u32 v7, v6, 3, v7")
        e("s_lshl_b32 s43, s3, 5")
        e("v_xor_b32 v6, s43, v7")
        e("s_and_b32 s43, s3, 1")
        e("s_lshl_b32 s43, s43, 6")
        e("v_xor_b32 v7, s43, v7")
        e("s_lshr_b32 s43, s3, 1")
        e("s_lshl_b32 s43, s43, 13")
        e(f"s_add_u32 s43, s43, {L_C}")
        e("v_add_u32 v7, s43, v7")
        e("v_and_b32 v8, 7, v0")
        e("v_bfe_u32 v9, v0, 3, 1")
        e(f"v_mul_u32_u24 v10, {XP}, v8")
        e("v_lshl_add_u32 v10, v2, 4, v10")
        e(f"v_mul_u32_u24 v11, {half*64}, v9")
        e("v_add_u32 v10, v10, v11")
        if nb == 8:
            e("s_and_b32 s43, s34, 1")
            e("s_lshl_b32 s43, s43, 9")
            e(f"s_add_u32 s43, s43, {L_X}")
            e("v_add_u32 v10, s43, v10")
        else:
            e(f"v_add_u32 v10, {L_X}, v10")
        e("s_lshl_b32 s60, s22, 3")
        e("s_lshl_b32 s52, s33, 2")
        e("s_add_u32 s52, s52, s60")
        e("s_add_u32 s52, s52, s34")
        e("s_lshl_b32 s52, s52, 11")
        e("s_lshl_b32 s53, s3, 9")
        e("s_add_u32 s52, s52, s53")
        e(f"s_add_u32 s56, s18, {a.wsoff}")
        e("s_addc_u32 s57, s19, 0")
        e(f"s_mov_b32 s58, {W_END}")
        e("s_mov_b32 s59, 0x20000")
        e("v_lshlrev_b32 v14, 6, v8")
        e("v_lshl_add_u32 v14, v2, 4, v14")
        e(f"v_mov_b32 v15, {TAGM}")
        sk = g.u("L_noc")
        XF = 16; WF = 48
        def wread(k):
            e(f"ds_read_b64_tr_b16 v[{WF+4*k}:{WF+4*k+1}], v6 offset:{k*4096}")
            e(f"ds_read_b64_tr_b16 v[{WF+4*k+2}:{WF+4*k+3}], v6 offset:{k*4096+2048}")
        def mfma(k):
            acc = 112 if k < half else 116
            xf = XF + 4*(k % half)
            cin = "0" if k in (0, half) else f"v[{acc}:{acc+3}]"
            e(f"v_mfma_f32_16x16x32_bf16 v[{acc}:{acc+3}], v[{WF+4*k}:{WF+4*k+3}], v[{xf}:{xf+3}], {cin}")
        if DF:
            for _ in range(d0 - DF): bload()
        if a.touch:
            e("s_bitcmp1_b32 s3, 0")
            e(f"s_cbranch_scc1 T_pub{tag}")
            e(f"s_branch T_gat{tag}")
            g.lab(f"T_back{tag}")
        if a.trace:
            tot = nb + 8
            for n in range(tot):
                issued = min(tot, n + d0)
                e(f"s_waitcnt vmcnt({issued - n - 1})")
                e(f"s_memrealtime s[{48+2*n if n >= 8 else 4+2*n}:{49+2*n if n >= 8 else 5+2*n}]") if False else None
                r = TR[n]
                e(f"s_memrealtime s[{r}:{r+1}]")
                if issued < tot:
                    if issued == nb: e("s_mov_b32 m0, s42"); e("s_nop 0")
                    (bload if issued < nb else cload)()
            e("s_waitcnt lgkmcnt(0)")
            e(f"s_add_u32 s56, s18, {W_DIAG + (1 << 20)}")
            e("s_addc_u32 s57, s19, 0")
            e("s_mov_b32 s58, 0x100000")
            e("s_lshl_b32 s40, s2, 2"); e("s_add_u32 s40, s40, s3"); e("s_lshl_b32 s40, s40, 7")
            e("v_mov_b32 v1, 0"); e("s_mov_b64 exec, 1")
            e("v_mov_b32 v2, s86"); e("buffer_store_dword v2, v1, s[56:59], s40 offen offset:124")
            e("v_mov_b32 v2, s22"); e("buffer_store_dword v2, v1, s[56:59], s40 offen offset:120")
            e("v_mov_b32 v2, s23"); e("buffer_store_dword v2, v1, s[56:59], s40 offen offset:116")
            e(f"v_mov_b32 v2, {tot}"); e("buffer_store_dword v2, v1, s[56:59], s40 offen offset:112")
            for n in range(tot):
                e(f"v_mov_b32 v2, s{TR[n]}"); e(f"buffer_store_dword v2, v1, s[56:59], s40 offen offset:{4*n}")
            e("s_endpgm")
        if a.diag and 12 in a.only:
            e(f"s_waitcnt vmcnt({d0-1})")
            g.stamp(12)
        if a.late:
            e(f"s_mov_b32 s35, {nb - d0}")
            e(f"s_bitcmp1_b32 {a.late}, s20")
            e(f"s_cbranch_scc1 L_bg{tag}")
        npre = min(a.npre * nb // 16, nb - d0 - 1)
        if npre > 0:
            e(f"s_mov_b32 s35, {npre}")
            g.lab(f"L_bp{tag}")
            e(f"s_waitcnt vmcnt({d-1})")
            bload()
            e("s_sub_u32 s35, s35, 1")
            e("s_cmp_lg_u32 s35, 0")
            e(f"s_cbranch_scc1 L_bp{tag}")
        g.stamp(13)
        e(f"s_mov_b32 s35, {nb - d0 - max(npre, 0)}")
        e(f"s_mov_b32 s37, {a.spin*8}")
        e("s_mov_b32 s34, -1")
        def check(back, out):
            e("s_waitcnt lgkmcnt(0)")
            e("v_readfirstlane_b32 s43, v12")
            e("s_sub_u32 s37, s37, 1")
            e(f"s_cbranch_scc1 {out}")
            e("s_cmp_eq_u32 s43, 0")
            e(f"s_cbranch_scc1 {back}")
        g.lab(f"L_bl{tag}")
        e("ds_read_b32 v12, v13 offset:4")
        e(f"s_waitcnt vmcnt({d-1})")
        bload()
        e("s_sub_u32 s35, s35, 1")
        e("s_cmp_eq_u32 s35, 0")
        e(f"s_cbranch_scc1 L_cl0{tag}")
        check(f"L_bl{tag}", f"L_bg{tag}")
        g.lab(f"L_bg{tag}")
        e(f"s_cmp_gt_u32 s35, {a.latet * nb // 16}")
        e("s_cselect_b32 s34, 0, -1")
        g.lab(f"L_bh{tag}")
        bload()
        e("s_sub_u32 s35, s35, 1")
        e("s_cmp_lg_u32 s35, 0")
        e(f"s_cbranch_scc1 L_bh{tag}")
        g.lab(f"L_cl0{tag}")
        e("s_mov_b32 m0, s42")
        ncp = a.cpre if nb == 16 else a.scpre
        def csync(k):
            lab = g.u("L_cs")
            e("s_mov_b64 exec, 1")
            e(f"ds_add_rtn_u32 v12, v13, v11 offset:{8+4*k}")
            e("s_mov_b64 exec, -1")
            e("s_waitcnt lgkmcnt(0)")
            e("v_readfirstlane_b32 s43, v12")
            e("s_cmp_ge_u32 s43, 3")
            e(f"s_cbranch_scc1 {lab}x")
            g.lab(lab)
            e(f"ds_read_b32 v12, v13 offset:{8+4*k}")
            e("s_waitcnt lgkmcnt(0)")
            e("v_readfirstlane_b32 s43, v12")
            e("s_cmp_lt_u32 s43, 4")
            e(f"s_cbranch_scc1 {lab}")
            g.lab(f"{lab}x")
        e("v_mov_b32 v11, 1")
        def noc(x):
            if nb == 8:
                e("s_cmp_eq_u32 s41, 1"); e(f"s_cbranch_scc1 {sk}{x}")
        e("s_mov_b32 s35, 8")
        KP = a.kp
        def burst():
            lab = g.u("L_bu")
            g.lab(lab)
            cload()
            e("s_sub_u32 s35, s35, 1")
            e(f"s_cmp_gt_u32 s35, {KP}")
            e(f"s_cbranch_scc1 {lab}")
        def steps(j0, j1, wait_paced, wait_burst):
            lab = g.u("L_st")
            e(f"s_cmp_eq_u32 s35, {KP}")
            e(f"s_cbranch_scc1 {lab}b")
            for j in range(j0, j1):
                e("ds_read_b32 v12, v13 offset:4")
                e(f"s_waitcnt vmcnt({max(d-1, j)}) lgkmcnt(0)")
                e("v_readfirstlane_b32 s43, v12")
                e("s_and_b32 s43, s43, s34")
                e(f"s_cbranch_scc1 {lab}a")
                cload()
                e("s_sub_u32 s35, s35, 1")
            e(f"s_waitcnt vmcnt({wait_paced})")
            e(f"s_branch {lab}c")
            g.lab(f"{lab}a")
            burst()
            g.lab(f"{lab}b")
            e(f"s_waitcnt vmcnt({wait_burst})")
            g.lab(f"{lab}c")
        assert ncp < 8 - KP
        early = max(0, min(ncp, d - (nb - n1)))
        if n1 < nb:
            noc("f")
            steps(0, early, nb - n1 + early, nb - n1 + 8 - KP)
            if nb == 8:
                e(f"s_branch {sk}g")
                g.lab(f"{sk}f")
                e(f"s_waitcnt vmcnt({nb - n1})")
                g.lab(f"{sk}g")
            g.stamp(1)
            csync(0)
            for k in range(n1): wread(k)
        else:
            early = 0
        noc("d")
        steps(early, ncp, ncp, 8 - KP)
        if nb == 8:
            e(f"s_branch {sk}e")
            g.lab(f"{sk}d")
            e("s_waitcnt vmcnt(0)")
            g.lab(f"{sk}e")
        g.stamp(2)
        csync(1)
        g.stamp(3)
        for k in range(n1 if n1 < nb else 0, nb): wread(k)
        noc("h")
        e(f"s_cmp_eq_u32 s35, {KP}")
        e(f"s_cbranch_scc1 {sk}h")
        e("s_cmp_eq_u32 s34, 0")
        e(f"s_cbranch_scc1 {sk}h")
        g.lab(f"L_cx{tag}")
        e("ds_read_b32 v12, v13 offset:4")
        e(f"s_waitcnt vmcnt({d-1}) lgkmcnt(0)")
        e("v_readfirstlane_b32 s43, v12")
        e("s_cmp_lg_u32 s43, 0")
        e(f"s_cbranch_scc1 {sk}i")
        cload()
        e("s_sub_u32 s35, s35, 1")
        e(f"s_cmp_gt_u32 s35, {KP}")
        e(f"s_cbranch_scc1 L_cx{tag}")
        e(f"s_branch {sk}h")
        g.lab(f"{sk}i")
        burst()
        g.lab(f"{sk}h")
        if a.sonly:
            e("s_cmp_eq_u32 s41, 1"); e("s_cbranch_scc1 L_diag")
            e("s_cmp_eq_u32 s35, 0"); e("s_cbranch_scc1 L_diag")
            g.lab(f"L_so{tag}")
            cload()
            e("s_sub_u32 s35, s35, 1"); e("s_cmp_lg_u32 s35, 0"); e(f"s_cbranch_scc1 L_so{tag}")
            e("s_branch L_diag")
        e("s_waitcnt lgkmcnt(0)")
        g.stamp(4)
        e("s_barrier")
        g.stamp(5)
        for f in range(half):
            e(f"ds_read_b128 v[{XF+4*f}:{XF+4*f+3}], v10 offset:{f*64}")
        e("ds_read_b32 v12, v13")
        e("ds_read_b32 v11, v13 offset:16")
        for f in range(half):
            e(f"s_waitcnt lgkmcnt({half + 1 - f})")
            mfma(f); mfma(f + half)
        e("s_waitcnt lgkmcnt(0)")

    bphase(16, D, "n", D0)
    e("s_branch L_pub")
    g.lab("L_slow")
    bphase(8, DS, "s", DS0)
    if a.touch:
        e("s_branch L_pub")
        g.lab("T_pubn"); e("s_branch T_backn")
        g.lab("T_pubs"); e("s_branch T_backs")
    g.lab("L_pub")
    e("s_and_b32 s53, s3, 1")
    e("s_lshl1_add_u32 s60, s38, s53")
    e("s_lshl_b32 s62, s60, 14")
    e("s_lshr_b32 s53, s3, 1")
    e("s_lshl_b32 s53, s53, 8")
    e("s_add_u32 s62, s62, s53")
    e("s_add_u32 s63, s62, 8192")
    e("s_add_u32 s54, s62, 4096")
    e("s_add_u32 s55, s63, 4096")
    for r in range(4):
        e(f"v_add_f32_dpp v{112+r}, v{116+r}, v{112+r} row_ror:8 row_mask:0xf bank_mask:0xf")
    e("s_mov_b32 exec_lo, 0x00ff00ff")
    e("s_mov_b32 exec_hi, 0x00ff00ff")
    for r in range(4):
        e(f"v_bfi_b32 v{112+r}, v15, v12, v{112+r}")
    e("v_readfirstlane_b32 s33, v11")
    e(f"buffer_store_dwordx4 v[112:115], v14, s[56:59], s52 offen {a.pst}")
    e("s_cmp_eq_u32 s33, 1")
    e(f"s_cselect_b32 s32, 0, {W_P2}")
    e("s_cbranch_scc1 L_pub1")
    e("s_add_u32 s52, s52, s32")
    e(f"buffer_store_dwordx4 v[112:115], v14, s[56:59], s52 offen {ST}")
    g.lab("L_pub1")
    e("s_mov_b64 exec, -1")
    g.stamp(6)
    e("s_cmp_eq_u32 s41, 1")
    e("s_cbranch_scc1 L_cdone")
    e("s_mov_b32 s37, s35")
    e("s_cmp_eq_u32 s35, 0")
    e("s_cbranch_scc1 L_clx")
    g.lab("L_cll")
    cload()
    e("s_sub_u32 s35, s35, 1")
    e("s_cmp_lg_u32 s35, 0")
    e("s_cbranch_scc1 L_cll")
    g.lab("L_clx")
    e("v_bfe_u32 v18, v0, 2, 2")
    e("v_and_b32 v3, 3, v0")
    e("v_lshlrev_b32 v14, 9, v2")
    e("v_lshl_add_u32 v14, v18, 6, v14")
    e("v_lshl_add_u32 v14, v3, 4, v14")
    e(f"v_mul_u32_u24 v16, {HP}, v8")
    e("v_lshl_add_u32 v16, v2, 4, v16")
    e(f"v_add_u32 v16, {L_H}, v16")
    e(f"v_mul_u32_u24 v17, {HP}, v18")
    e("v_lshl_add_u32 v17, v3, 4, v17")
    e("v_lshl_add_u32 v17, v1, 6, v17")
    e("v_bfe_u32 v18, v0, 4, 1")
    e("v_lshl_add_u32 v17, v18, 3, v17")
    e("s_lshr_b32 s52, s3, 1")
    e(f"s_mul_i32 s52, s52, {4*HP}")
    e("s_and_b32 s53, s3, 1")
    e("s_lshl_b32 s53, s53, 7")
    e("s_add_u32 s52, s52, s53")
    e(f"s_add_u32 s52, s52, {L_H}")
    e("v_add_u32 v17, s52, v17")
    e("v_xor_b32 v37, 32, v7")
    e(f"v_mul_u32_u24 v19, {4*YS}, v8")
    e("v_lshl_add_u32 v19, v9, 6, v19")
    e("v_lshl_add_u32 v19, v2, 4, v19")
    e("s_lshl2_add_u32 s52, s40, s3")
    e("s_and_b32 s53, s52, 7")
    e("s_cmp_eq_u32 s53, s20")
    e("s_cselect_b32 s33, s33, 0")
    e("s_lshr_b32 s52, s52, 3")
    e("s_lshl_b32 s53, s53, 5")
    e("s_add_u32 s52, s52, s53")
    e(f"s_mul_i32 s52, s52, {YS}")
    e("s_lshl_b32 s53, s38, 7")
    e("s_add_u32 s52, s52, s53")
    e(f"s_add_u32 s52, s52, {W_Y}")
    e(f"s_mov_b32 s61, {a.spin}")
    GA = [20, 24, 28, 32, 88, 92, 96, 100]
    def gloads(slow):
        for k, (so, off) in enumerate((("s62", 0), ("s62", 2048), ("s63", 0), ("s63", 2048), ("s54", 0), ("s54", 2048), ("s55", 0), ("s55", 2048))[:8 if slow else 4]):
            e(f"buffer_load_dwordx4 v[{GA[k]}:{GA[k]+3}], v14, s[56:59], {so} offen offset:{off} {LD}")
    def creads():
        for ks in range(4):
            for tt in range(2):
                r = 48 + 8*ks + 4*tt
                av = 7 if tt == 0 else 37
                off = (ks >> 1)*16384 + (ks & 1)*4096
                e(f"ds_read_b64_tr_b16 v[{r}:{r+1}], v{av} offset:{off}")
                e(f"ds_read_b64_tr_b16 v[{r+2}:{r+3}], v{av} offset:{off+2048}")
    def gather(slow):
        t = "s" if slow else "n"
        n = 8 if slow else 4
        if a.gk:
            e(f"s_waitcnt vmcnt({a.gk})")
            e(f"s_cmp_ge_u32 s37, {a.gk}")
            e(f"s_cbranch_scc1 L_gw{t}")
        e("s_waitcnt vmcnt(0)")
        g.lab(f"L_gw{t}")
        if a.gsleep: e(f"s_sleep {a.gsleep}")
        g.stamp(7)
        gloads(slow)
        e(f"s_waitcnt vmcnt({n})")
        g.stamp(11)
        e("s_barrier")
        creads()
        e(f"s_branch L_gc{t}")
        g.lab(f"L_g{t}")
        if a.gretry: e(f"s_sleep {a.gretry}")
        for r in (62, 63, 54, 55): e(f"s_add_u32 s{r}, s{r}, s32")
        e("s_sub_u32 s32, 0, s32")
        gloads(slow)
        g.lab(f"L_gc{t}")
        first = True
        for k in range(n):
            e(f"s_waitcnt vmcnt({n-1-k})")
            for r in range(4):
                if first: e(f"v_xor_b32 v18, v{GA[k]+r}, v12")
                else: e(f"v_bitop3_b32 v18, v18, v{GA[k]+r}, v12 bitop3:0xf6")
                first = False
        e("v_and_b32 v18, v15, v18")
        e("v_cmp_ne_u32 vcc, 0, v18")
        e(f"s_cbranch_vccz L_gok{t}")
        e("s_sub_u32 s61, s61, 1")
        e("s_cmp_lg_u32 s61, 0")
        e(f"s_cbranch_scc1 L_g{t}")
        g.lab(f"L_gok{t}")
        if slow:
            for k in range(4):
                for h in (0, 2):
                    e(f"v_pk_add_f32 v[{GA[k]+h}:{GA[k]+h+1}], v[{GA[k]+h}:{GA[k]+h+1}], v[{GA[k+4]+h}:{GA[k+4]+h+1}]")
    e("s_and_b32 s60, s60, 7")
    e("s_cmp_eq_u32 s60, 3")
    e("s_cbranch_scc0 L_gnorm")
    gather(True)
    e("s_branch L_act")
    if a.touch:
        g.lab("T_gatn"); e("s_branch T_backn")
        g.lab("T_gats"); e("s_branch T_backs")
    g.lab("L_gnorm")
    gather(False)
    g.lab("L_act")
    g.stamp(8)
    if a.diag: e(f"s_sub_u32 s84, {a.spin+1}, s61")
    e("v_pk_add_f32 v[20:21], v[20:21], v[24:25]")
    e("v_pk_add_f32 v[22:23], v[22:23], v[26:27]")
    e("v_pk_add_f32 v[28:29], v[28:29], v[32:33]")
    e("v_pk_add_f32 v[30:31], v[30:31], v[34:35]")
    e("v_cvt_pk_bf16_f32 v24, v20, v21")
    e("v_cvt_pk_bf16_f32 v25, v22, v23")
    e("v_cvt_pk_bf16_f32 v26, v28, v29")
    e("v_cvt_pk_bf16_f32 v27, v30, v31")
    e("v_lshlrev_b32 v20, 16, v24")
    e("v_and_b32 v21, 0xffff0000, v24")
    e("v_lshlrev_b32 v22, 16, v25")
    e("v_and_b32 v23, 0xffff0000, v25")
    for r in range(4): e(f"v_mul_f32 v{32+r}, 0xbfb8aa3b, v{20+r}")
    for r in range(4): e(f"v_exp_f32 v{32+r}, v{32+r}")
    e("v_lshlrev_b32 v28, 16, v26")
    e("v_and_b32 v29, 0xffff0000, v26")
    for r in range(4): e(f"v_add_f32 v{32+r}, 1.0, v{32+r}")
    for r in range(4): e(f"v_rcp_f32 v{32+r}, v{32+r}")
    e("v_lshlrev_b32 v30, 16, v27")
    e("v_and_b32 v31, 0xffff0000, v27")
    e("v_pk_mul_f32 v[20:21], v[20:21], v[32:33]")
    e("v_pk_mul_f32 v[22:23], v[22:23], v[34:35]")
    e("v_cvt_pk_bf16_f32 v24, v20, v21")
    e("v_cvt_pk_bf16_f32 v25, v22, v23")
    e("v_lshlrev_b32 v20, 16, v24")
    e("v_and_b32 v21, 0xffff0000, v24")
    e("v_lshlrev_b32 v22, 16, v25")
    e("v_and_b32 v23, 0xffff0000, v25")
    e("v_pk_mul_f32 v[20:21], v[20:21], v[28:29]")
    e("v_pk_mul_f32 v[22:23], v[22:23], v[30:31]")
    e("v_cvt_pk_bf16_f32 v24, v20, v21")
    e("v_cvt_pk_bf16_f32 v25, v22, v23")
    e("ds_write_b64 v17, v[24:25]")
    e("v_cmp_eq_u32 vcc, 1, v9")
    e("s_waitcnt lgkmcnt(0)")
    e("s_barrier")
    for ks in range(4): e(f"ds_read_b128 v[{20+4*ks}:{23+4*ks}], v16 offset:{64*ks}")
    for ks in range(4):
        e(f"s_waitcnt lgkmcnt({3-ks})")
        for tt in range(2):
            cin = "0" if ks == 0 else f"v[{80+4*tt}:{83+4*tt}]"
            e(f"v_mfma_f32_16x16x32_bf16 v[{80+4*tt}:{83+4*tt}], v[{48+8*ks+4*tt}:{51+8*ks+4*tt}], v[{20+4*ks}:{23+4*ks}], {cin}")
    e("s_cmp_eq_u32 s33, 1")
    e("s_nop 6")
    for r in range(4):
        e(f"v_cndmask_b32 v{80+r}, v{80+r}, v{84+r}, vcc")
    for r in range(4):
        e(f"v_bfi_b32 v{80+r}, v15, v12, v{80+r}")
    e("s_cbranch_scc1 L_yloc")
    e(f"buffer_store_dwordx4 v[80:83], v19, s[56:59], s52 offen {ST}")
    e("s_branch L_ydone")
    g.lab("L_yloc")
    e(f"buffer_store_dwordx4 v[80:83], v19, s[56:59], s52 offen {a.yst}")
    g.lab("L_ydone")
    g.stamp(9)
    e("s_barrier")
    g.lab("L_cdone")
    if a.diag:
        e("s_branch L_diag")
    e("s_endpgm")

    g.lab("L_ctl")
    g.stamp(1)
    decode("k", 37, 38, 39)
    e("s_add_u32 s52, s56, s36")
    e("s_addc_u32 s53, s57, 0")
    e("s_lshr_b32 s37, s23, s24")
    e("s_and_b32 s37, s37, 1")
    e("s_lshl_b32 s37, s37, 10")
    if ROT:
        e(f"s_mov_b32 s38, {a.rotn:#x}")
        rot(38, 39)
        e("s_lshl_b32 s38, s38, 6")
        e("s_lshr_b32 s39, 1023, s24")
        e("v_add_u32 v84, s38, v7")
        e("v_bfi_b32 v84, s39, v84, v7")
        e("v_add_u32 v84, s37, v84")
    else:
        e("v_add_u32 v84, s37, v7")
    for b in range(1, 8):
        e(f"v_add_u32 v{84+b}, {b*65536}, v84")
    e("s_waitcnt lgkmcnt(0)")
    e("s_add_u32 s33, s33, 1")
    e("v_mov_b32 v6, s33")
    if a.mark:
        e("s_cmp_eq_u32 s35, s33")
        e("s_cbranch_scc0 L_ontime")
        e("ds_write_b32 v3, v3 offset:4")
        if a.diag: e("s_mov_b32 s82, 1")
        g.lab("L_ontime")
        e(f"s_sub_u32 s35, s2, {a.rcls}")
        e("s_cmp_lt_u32 s35, 2")
        e("s_cbranch_scc0 L_nomark")
        e("s_mov_b32 s10, s33")
        e("s_atomic_swap s10, s[56:57], s30")
        g.lab("L_nomark")
    e("s_cmp_lt_u32 s26, 2")
    e("s_cbranch_scc1 L_route")
    e("s_branch L_rdone")
    g.lab("L_route")
    e("s_and_b32 s30, s27, 7")
    e("s_lshl_b32 s30, s30, 13")
    e(f"s_sub_u32 s30, {31 << 11}, s30")
    e("s_lshl_b32 s31, s27, 7")
    e(f"s_add_u32 s31, s31, {W_R}")
    for tk in range(4):
        for hlf in range(2):
            n = 2*tk + hlf
            e(f"s_waitcnt vmcnt({7 - n + (1 if n == 0 else 0)})")
            for r in range(4):
                src = "0" if (hlf == 0 and r == 0) else f"v{8+tk}"
                e(f"v_dot2_f32_bf16 v{8+tk}, v{16+4*n+r}, v{48+4*hlf+r}, {src}")
    g.stamp(12)
    e("s_nop 1")
    e("s_nop 0")
    e("v_permlane32_swap_b32 v8, v9")
    e("v_permlane32_swap_b32 v10, v11")
    e("v_bfe_u32 v13, v0, 4, 1")
    e("v_add_f32 v8, v8, v9")
    e("v_add_f32 v10, v10, v11")
    e("v_lshrrev_b32 v14, 5, v0")
    e("v_lshl_add_u32 v13, v13, 1, v14")
    e("v_permlane16_swap_b32 v8, v10")
    e("v_lshlrev_b32 v13, 11, v13")
    e("v_add_f32 v8, v8, v10")
    e("v_sub_u32 v12, s30, v13")
    for sh in (8, 4, 2, 1):
        e("s_nop 0" if sh == 8 else "s_nop 1")
        e(f"v_add_f32_dpp v8, v8, v8 row_ror:{sh} row_mask:0xf bank_mask:0xf")
    e("s_movk_i32 s32, 0x7ff")
    e("v_cvt_pk_bf16_f32 v9, v8, v8")
    e("v_cmp_u_f32 vcc, v8, v8")
    e("v_and_or_b32 v12, v6, s32, v12")
    e("v_ashrrev_i32 v10, 31, v9")
    e("v_or_b32 v10, 0x80000000, v10")
    e("v_xor_b32 v9, v9, v10")
    e("v_cndmask_b32 v9, v9, 0, vcc")
    e("v_and_b32 v9, 0xffff0000, v9")
    e("v_or_b32 v8, v9, v12")
    e("v_or_b32 v9, v9, v12")
    e("s_nop 1")
    e("v_permlane32_swap_b32 v8, v9")
    e("s_nop 0")
    e("v_max_u32 v8, v8, v9")
    e("v_max_u32 v9, v8, v9")
    e("s_nop 1")
    e("v_permlane16_swap_b32 v8, v9")
    if a.ratom:
        e("v_max_u32 v10, v8, v9")
        e("s_mov_b32 s9, s33")
        e("v_readfirstlane_b32 s8, v10")
        e("s_atomic_swap_x2 s[8:9], s[56:57], s31")
    else:
        e("v_mov_b32 v11, v6")
        e("v_max_u32 v10, v8, v9")
        e("s_mov_b64 exec, 1")
        e(f"buffer_store_dwordx2 v[10:11], v1, s[56:59], s31 offen {ST}")
        e("s_mov_b64 exec, -1")
    g.stamp(2)
    if a.diag and a.rack:
        e("s_waitcnt vmcnt(0) lgkmcnt(0)")
        g.stamp(9)
    g.lab("L_rdone")
    e("s_cmp_eq_u32 s25, 1")
    e("s_cbranch_scc0 L_poll")
    e("v_lshlrev_b32 v13, 7, v0")
    e(f"s_mov_b32 s30, {W_R}")
    e("v_and_b32 v14, 1, v0")
    e("v_lshlrev_b32 v92, 7, v14")
    for r in range(1, 4):
        e(f"v_add_u32 v{92+r}, {32*r}, v92")
    e("v_lshrrev_b32 v15, 1, v0")
    e("v_lshlrev_b32 v15, 7, v15")
    e("v_lshl_add_u32 v15, v14, 4, v15")
    e("s_sub_u32 s31, s21, 28")
    e("s_lshl_b32 s31, s31, 13")
    e(f"s_add_u32 s31, s31, {W_M}")
    e("s_add_u32 s32, s31, 4096")
    e(f"s_mov_b32 s34, {a.spin}")
    if a.agdelay < 0: e("s_waitcnt vmcnt(0) lgkmcnt(0)")
    elif a.agdelay: e(f"s_sleep {a.agdelay}")
    NP = a.npoll
    for k in range(NP-1):
        e(f"buffer_load_dwordx2 v[{100+2*k}:{101+2*k}], v13, s[56:59], s30 offen {LD}")
        if a.psleep: e(f"s_sleep {a.psleep}")
    g.lab("L_ag")
    for k in range(NP):
        kk = (k+NP-1) % NP
        e(f"buffer_load_dwordx2 v[{100+2*kk}:{101+2*kk}], v13, s[56:59], s30 offen {LD}")
        e(f"s_waitcnt vmcnt({NP-1})")
        e(f"v_cmp_ne_u32 vcc, v{101+2*k}, v6")
        e(f"v_mov_b32 v8, v{100+2*k}")
        e("s_cbranch_vccz L_agok")
        if a.psleep and NP > 1: e(f"s_sleep {a.psleep}")
    e("s_sub_u32 s34, s34, 1")
    e("s_cmp_lg_u32 s34, 0")
    e("s_cbranch_scc1 L_ag")
    g.lab("L_agok")
    g.stamp(11)
    if a.diag: e(f"s_sub_u32 s85, {a.spin+1}, s34")
    e("s_nop 0")
    e("v_max_u32_dpp v8, v8, v8 quad_perm:[1,0,3,2] row_mask:0xf bank_mask:0xf")
    e("s_nop 1")
    e("v_max_u32_dpp v8, v8, v8 quad_perm:[2,3,0,1] row_mask:0xf bank_mask:0xf")
    e("s_nop 1")
    e("v_max_u32_dpp v8, v8, v8 row_half_mirror row_mask:0xf bank_mask:0xf")
    e("v_xor_b32 v8, 0xf800, v8")
    for r in range(4):
        e(f"ds_bpermute_b32 v{96+r}, v{92+r}, v8")
    e("s_waitcnt lgkmcnt(0)")
    e(f"buffer_store_dwordx4 v[96:99], v15, s[56:59], s31 offen {ST}")
    e(f"buffer_store_dwordx4 v[96:99], v15, s[56:59], s32 offen {ST}")
    g.stamp(8)
    g.lab("L_poll")
    if True:
        e("s_getreg_b32 s35, hwreg(HW_REG_XCC_ID, 0, 4)")
        if a.diag:
            e("s_getreg_b32 s83, hwreg(HW_REG_XCC_ID)")
            e("s_add_u32 s83, s83, 0x1000000")
        e("s_lshl_b32 s54, s20, 8")
        e(f"s_add_u32 s54, s54, {W_X}")
        e("s_lshl_b32 s55, s21, 3")
        e("s_add_u32 s55, s55, s54")
        e("s_mov_b64 exec, 1")
        e("v_mov_b32 v4, s35")
        e("v_mov_b32 v5, v6")
        e(f"buffer_store_dwordx2 v[4:5], v1, s[56:59], s55 offen {ST}")
        e("s_mov_b64 exec, -1")
    e(f"v_and_b32 v12, {TAGM}, v6")
    e("ds_write_b32 v3, v12")
    if a.span:
        e("s_lshl_b32 s34, s2, 2")
        e(f"s_add_u32 s34, s34, {W_S}")
        e("v_mov_b32 v4, s86")
        e("s_mov_b64 exec, 1")
        e("buffer_store_dword v4, v1, s[56:59], s34 offen sc1")
        e("s_mov_b64 exec, -1")
    e("s_cmp_lt_u32 s26, 2")
    e("s_cbranch_scc0 L_nofix")
    e("s_mov_b32 s32, 0x7f807f80")
    e("s_mov_b32 s34, 0x00400040")
    for v in range(16, 48, 2):
        e(f"v_and_b32 v48, s32, v{v}")
        e(f"v_and_b32 v49, s32, v{v+1}")
        e("v_add_u32 v48, 0x00800080, v48")
        e("v_add_u32 v49, 0x00800080, v49")
        e("v_lshrrev_b32 v48, 9, v48")
        e("v_lshrrev_b32 v49, 9, v49")
        e(f"v_and_or_b32 v{v}, v48, s34, v{v}")
        e(f"v_and_or_b32 v{v+1}, v49, s34, v{v+1}")
    g.lab("L_nofix")
    e("v_lshlrev_b32 v13, 3, v0")
    e(f"s_mov_b32 s34, {a.spin*4}")
    e("s_and_b32 s36, s33, 0x7ff")
    e("s_mov_b32 s37, s36")
    if a.freerun:
        e("s_not_b64 s[38:39], s[36:37]")
        for k in range(4): e(f"s_mov_b64 s[{MB+2*k}:{MB+2*k+1}], s[38:39]")
    if a.pdelay:
        e("s_cmp_lt_u32 s26, 2")
        e("s_cbranch_scc1 L_pl")
        e("s_cmp_eq_u32 s25, 1")
        e("s_cbranch_scc1 L_pl")
        e(f"s_sleep {a.pdelay}")
    g.lab("L_pl")
    e(f"s_load_dwordx8 s[{MB}:{MB+7}], s[52:53], 0 glc")
    if a.freerun: e(f"s_sleep {a.freerun}")
    else: e("s_waitcnt lgkmcnt(0)")
    for k in range(4): e(f"s_mov_b64 s[{CP+2*k}:{CP+2*k+1}], s[{MB+2*k}:{MB+2*k+1}]")
    e(f"s_xor_b64 s[38:39], s[{CP}:{CP+1}], s[36:37]")
    e(f"s_xor_b64 s[42:43], s[{CP+2}:{CP+3}], s[36:37]")
    e("s_or_b64 s[38:39], s[38:39], s[42:43]")
    e(f"s_xor_b64 s[42:43], s[{CP+4}:{CP+5}], s[36:37]")
    e("s_or_b64 s[38:39], s[38:39], s[42:43]")
    e(f"s_xor_b64 s[42:43], s[{CP+6}:{CP+7}], s[36:37]")
    e("s_or_b64 s[38:39], s[38:39], s[42:43]")
    e("s_or_b32 s38, s38, s39")
    e("s_and_b32 s38, s38, 0x7ff")
    e("s_cbranch_scc0 L_pok")
    e("s_sub_u32 s34, s34, 1")
    e("s_cmp_lg_u32 s34, 0")
    e("s_cbranch_scc1 L_pl")
    g.lab("L_pok")
    e("s_cmp_eq_u32 s25, 1")
    e("s_cbranch_scc1 L_nox")
    e(f"s_mov_b32 m0, {L_X}")
    for b in range(8):
        e(f"s_and_b32 s38, s{CP+b}, 0xf800")
        e(f"buffer_load_dwordx4 v{84+b}, s[44:47], s38 offen {a.xsnt} lds")
        if b < 7:
            e(f"s_add_u32 m0, m0, {XP}")
    g.lab("L_nox")
    e("s_mov_b32 exec_hi, 0")
    e(f"buffer_load_dwordx2 v[14:15], v13, s[56:59], s54 offen {LD}")
    e("s_mov_b32 exec_hi, -1")
    e("ds_write_b32 v3, v3 offset:4")
    g.stamp(3)
    e("s_lshr_b32 s38, s21, 2")
    e("s_mov_b32 m0, s38")
    e("s_lshl_b32 s38, s38, 16")
    e(f"s_movrels_b32 s40, s{CP}")
    e("s_and_b32 s39, s40, 0xf800")
    e("s_add_u32 s39, s39, s38")
    e("s_and_b32 s42, s21, 3")
    e("s_lshl3_add_u32 s38, s42, s20")
    e("s_lshl_b32 s38, s38, 6")
    e("s_add_u32 s39, s39, s38")
    e("v_and_b32 v8, 7, v0")
    e("v_lshlrev_b32 v8, 3, v8")
    e("v_bfe_u32 v9, v0, 4, 1")
    e("v_lshl_add_u32 v8, v9, 2, v8")
    e("v_lshrrev_b32 v9, 5, v0")
    e("v_lshl_add_u32 v8, v9, 1, v8")
    e(f"buffer_load_ushort v10, v8, s[44:47], s39 offen {a.xsnt}")
    e("s_lshl_b32 s30, s20, 5")
    e("s_add_u32 s30, s30, s21")
    e(f"s_mul_i32 s30, s30, {YS}")
    e(f"s_add_u32 s30, s30, {W_Y}")
    NX = 1
    e("v_lshlrev_b32 v59, 7, v0")
    if a.ptp:
        e("s_add_u32 s37, s24, 1")
        e("s_lshr_b32 s38, s23, s37")
        e("s_lshl_b32 s38, s38, 2")
        e("s_lshl3_add_u32 s38, s22, s38")
        e("s_lshl1_add_u32 s37, s24, 1")
        e("s_and_b32 s37, s37, s23")
        e("s_add_u32 s38, s38, s37")
        e("s_lshl_b32 s38, s38, 11")
        e("s_mov_b64 exec, 0xffff")
        e(f"buffer_load_dword v57, v59, s[56:59], s38 offen {a.ptf}")
        NX += 1
    def ptouch():
        if a.pty in (1, 2):
            e("s_mov_b64 exec, 0xfffffff")
        else:
            msk = {}
            nrm = [p for p in range(28) if p % 4 != 1]
            for k, c in enumerate(a.qcls): msk[c] = sum(1 << nrm[4*k + x] for x in range(4))
            for k, c in enumerate(a.tcls): msk[c] = 1 << (8*k + 1) | 1 << (8*k + 5) | 1 << nrm[16 + k]
            msk[SP] = 1 << 25 | 1 << nrm[19] | 1 << nrm[20]
            e(f"s_mov_b32 s37, {msk[0]:#x}")
            for c in range(1, 8):
                e(f"s_cmp_eq_u32 s20, {c}")
                e(f"s_cselect_b32 s37, {msk[c]:#x}, s37")
            e("s_mov_b32 exec_hi, 0")
            e("s_mov_b32 exec_lo, s37")
        e(f"buffer_load_dword v58, v59, s[56:59], s30 offen {a.ptf}")
        e("s_mov_b64 exec, -1")
    if a.pty in (1, 3):
        ptouch(); NX += 1
    e("s_mov_b64 exec, -1")
    e(f"s_waitcnt vmcnt({NX})")
    e("v_cmp_eq_u32 vcc, s35, v14")
    e("v_cmp_eq_u32 s[42:43], v15, v6")
    e("s_and_b32 s42, s42, vcc_lo")
    e("s_cmp_eq_u32 s42, -1")
    e("s_cselect_b32 s42, 1, 0")
    if a.probe == 1:
        e("s_cbranch_scc1 L_probe")
        for _ in range(6): e("s_sleep 127")
        g.lab("L_probe")
    if a.probe == 2: e("s_mov_b32 s42, 0")
    e("v_mov_b32 v13, s42")
    e("ds_write_b32 v3, v13 offset:16")
    e("s_cmp_eq_u32 s25, 1")
    e("s_cbranch_scc1 L_nobar")
    e("s_waitcnt lgkmcnt(0)")
    g.stamp(4)
    e("s_barrier")
    g.lab("L_nobar")
    if a.touch:
        e("s_branch T_red")
        g.lab("T_redb")
    srd(e, 48, "s14", "s15", XBYTES)
    e("s_cmp_lt_u32 s26, 2")
    e("s_cbranch_scc0 L_nocopy")
    e("s_lshr_b32 m0, s27, 3")
    e("s_and_b32 s34, s27, 7")
    e(f"s_movrels_b32 s31, s{CP}")
    e("s_lshl_b32 s34, s34, 2")
    e("s_bfe_u32 s31, s31, 0x5000b")
    e("s_sub_u32 s31, s31, s34")
    for tk in range(4):
        e(f"s_cmp_eq_u32 s31, {tk}")
        e(f"s_cbranch_scc1 L_cp{tk}")
        for n in (2*tk, 2*tk+1):
            e(f"buffer_store_dwordx4 v[{16+4*n}:{19+4*n}], v7, s[48:51], {'s28' if n < 4 else 's29'} offen offset:{(n%4)*1024} {a.ost}")
        g.lab(f"L_cp{tk}")
    g.lab("L_nocopy")
    if a.pty == 2: ptouch()
    e("v_mov_b32 v11, s40")
    e("v_ashrrev_i32 v13, 31, v11")
    e("v_not_b32 v13, v13")
    e("v_or_b32 v13, 0x80000000, v13")
    e("v_xor_b32 v11, v11, v13")
    e("v_and_b32 v11, 0xffff0000, v11")
    e("v_mul_f32 v11, 0xbfb8aa3b, v11")
    e("v_exp_f32 v11, v11")
    e("s_nop 0")
    e("v_add_f32 v11, 1.0, v11")
    e("v_rcp_f32 v11, v11")
    e("s_or_b32 s41, s41, s25")
    e("v_cvt_pk_bf16_f32 v11, v11, v11")
    e("v_and_b32 v11, 0xffff0000, v11")
    e("s_waitcnt vmcnt(0)")
    for r in range(4): e(f"v_mov_b32 v{28+r}, v12")
    e("s_cmp_eq_u32 s41, 1")
    e("s_cbranch_scc1 L_red")
    e("s_waitcnt lgkmcnt(0)")
    e("s_barrier")
    e("s_barrier")
    e("s_barrier")
    g.lab("L_red")
    g.stamp(5)
    e(f"s_mov_b32 s34, {a.spin}")
    def rload(n):
        if n == 3: e("s_mov_b32 exec_hi, 0")
        e(f"buffer_load_dwordx4 v[{16+4*n}:{19+4*n}], v7, s[56:59], s30 offen offset:{n*1024} {a.yld}")
        if n == 3: e("s_mov_b32 exec_hi, -1")
    g.lab("L_rl")
    for n in range(4): rload(n)
    for n in range(4):
        e(f"s_waitcnt vmcnt({3-n})")
        for r in range(4):
            v = 16+4*n+r
            if n == 0 and r == 0: e(f"v_xor_b32 v9, v{v}, v12")
            else: e(f"v_bitop3_b32 v9, v9, v{v}, v12 bitop3:0xf6")
        if n == 1:
            e("v_pk_add_f32 v[32:33], v[16:17], v[20:21]")
            e("v_pk_add_f32 v[34:35], v[18:19], v[22:23]")
        if n == 2:
            e("v_pk_add_f32 v[32:33], v[32:33], v[24:25]")
            e("v_pk_add_f32 v[34:35], v[34:35], v[26:27]")
    e(f"v_and_b32 v9, {TAGM}, v9")
    e("v_cmp_ne_u32 vcc, 0, v9")
    e("v_pk_add_f32 v[16:17], v[32:33], v[28:29]")
    e("v_pk_add_f32 v[18:19], v[34:35], v[30:31]")
    e("s_cbranch_vccz L_rok")
    if a.rretry: e(f"s_sleep {a.rretry}")
    e("s_sub_u32 s34, s34, 1")
    e("s_cmp_lg_u32 s34, 0")
    e("s_cbranch_scc1 L_rl")
    if a.touch:
        e("s_branch L_rok")
        g.lab("T_red"); e("s_branch T_redb")
    g.lab("L_rok")
    g.stamp(6)
    if a.diag: e(f"s_sub_u32 s84, {a.spin+1}, s34")
    e("s_nop 0")
    e("v_permlane32_swap_b32 v16, v17")
    e("v_permlane32_swap_b32 v18, v19")
    e("v_lshlrev_b32 v10, 16, v10")
    e("v_add_f32 v16, v16, v17")
    e("v_add_f32 v18, v18, v19")
    e("s_nop 1")
    e("v_permlane16_swap_b32 v16, v18")
    e("s_nop 0")
    e("v_add_f32 v16, v16, v18")
    e("s_nop 1")
    e("v_add_f32_dpp v16, v16, v16 row_ror:8 row_mask:0xf bank_mask:0xf")
    e("s_mov_b32 exec_lo, 0x00ff00ff")
    e("s_mov_b32 exec_hi, 0x00ff00ff")
    e("v_cvt_pk_bf16_f32 v16, v16, v16")
    e("v_and_b32 v16, 0xffff0000, v16")
    e("v_mul_f32 v16, v16, v11")
    e("v_cvt_pk_bf16_f32 v16, v16, v16")
    e("v_and_b32 v16, 0xffff0000, v16")
    e("v_fma_f32 v16, v10, 0, v16")
    e("v_add_f32 v16, v10, v16")
    e("v_cvt_pk_bf16_f32 v16, v16, v16")
    e(f"buffer_store_short v16, v8, s[48:51], s39 offen {a.ost2}")
    e(f"s_cmp_eq_u32 s2, {28*8 + SP}")
    e("s_cbranch_scc0 L_nobump")
    e("s_mov_b64 exec, 1")
    e(f"s_mov_b32 s30, {W_E}")
    e("buffer_store_dword v6, v1, s[56:59], s30 offen sc1")
    g.lab("L_nobump")
    g.stamp(7)
    if a.hold:
        e("s_cmp_eq_u32 s2, 1")
        e("s_cbranch_scc0 L_end")
        g.lab("L_hold")
        e("s_memrealtime s[68:69]")
        e("s_waitcnt lgkmcnt(0)")
        e("s_sub_u32 s68, s68, s86")
        e(f"s_cmp_lt_u32 s68, {a.hold}")
        e("s_cbranch_scc1 L_hold")
    if a.diag:
        g.lab("L_diag")
        e("s_waitcnt vmcnt(0) lgkmcnt(0)")
        g.stamp(10)
        e("s_mov_b64 exec, 1")
        e(f"s_add_u32 s56, s18, {W_DIAG}")
        e("s_addc_u32 s57, s19, 0")
        e("s_mov_b32 s58, 0x100000")
        e("s_mov_b32 s59, 0x20000")
        e("s_mul_i32 s30, s2, 5"); e("s_add_u32 s30, s30, s3"); e("s_lshl_b32 s30, s30, 6")
        e("v_mov_b32 v1, 0")
        e("s_mov_b32 s70, s86")
        for k in range(16):
            e(f"v_mov_b32 v2, s{70+k}")
            e(f"buffer_store_dword v2, v1, s[56:59], s30 offen offset:{4*k}")
    g.lab("L_end")
    e("s_endpgm")
    g.lab("L_code_end")

    hdr = open("standalone__moe_arch_mod__sampling.s.ref").read().split("; Override launch")[0] if not a.nohdr else ""
    src = hdr + f"; @launch grid=(256,1,1) block=(320,1,1) lds={a.lds or L_END}\n"
    ALIGN = ".p2align 8" if not a.align else ".p2align 12" + (f"\n.fill {(4096-768)//4}, 4, 0xbf810000\n.p2align 8" if a.align == 2 else "")
    src += f""".amdgcn_target "amdgcn-amd-amdhsa--gfx950"
.text
.globl {KN}
{ALIGN}
.type {KN},@function
{KN}:
""" + "\n".join(x for x in g.L if x) + f"""
.section .rodata,"a"
.p2align 6
.amdhsa_kernel {KN}
  .amdhsa_next_free_vgpr {a.vgpr}
  .amdhsa_next_free_sgpr 96
  .amdhsa_accum_offset {min(a.vgpr,256)}
  .amdhsa_group_segment_fixed_size 0
  .amdhsa_kernarg_size 64
  .amdhsa_user_sgpr_count 2
  .amdhsa_user_sgpr_kernarg_segment_ptr 1
  .amdhsa_system_sgpr_workgroup_id_x 1
  .amdhsa_float_denorm_mode_32 3
.end_amdhsa_kernel
"""
    src += f'; W_S={W_S + a.wsoff}\n'
    return src

def parse(argv):
    p = argparse.ArgumentParser()
    p.add_argument("-o", default="/dev/stdout")
    for k, v in dict(diag=0, depth=5, sdepth=0, spin=20000, wsoff=0, nohdr=1, hold=0, span=0, special=6, rbar=1, lds=0, vgpr=120,
                     tail=4, c1=4, gearly=0, rdelay=-1, agdelay=-1, freerun=1, pretouch=1, hintg=24, cmid=2, pend=1, cpace=8, npoll=3, psleep=2, gack=1, gsleep=0, gretry=0, rretry=0, ptp=1, cpre=4, npre=4, clate=1, pty=3, ipf=1, sonly=0, lin=0, late=0, rcls=1, probe=0, trace=0, mark=1, pdelay=0, rotn=0, rots=0, rack=0, df=2, kp=3, latet=2, touch=1, align=2, t0=0, keep=0, scpre=3, d0=0, sd0=0, ratom=1, gk=1, cptime=0, cmap=0x76543210).items():
        p.add_argument("--" + k, type=lambda x: int(x, 0), default=v)
    for k, v in dict(nt="nt", st="sc1", ld="sc1", ost="", ost2="", xnt="nt", wrnt="", xsnt="", ptf="nt", ipff="", yst="", yld="sc1", pst="", qcls="1237", tcls="045").items():
        p.add_argument("--" + k, default=v)
    p.add_argument("--only", default="")
    a = p.parse_args(argv)
    for k in ("nt", "st", "ld", "ost", "ost2", "xnt", "wrnt", "xsnt", "ptf", "ipff", "yst", "yld", "pst"):
        setattr(a, k, getattr(a, k).replace("+", " ").replace("none", ""))
    a.qcls = [int(x) for x in a.qcls]; a.tcls = [int(x) for x in a.tcls]
    a.only = [int(x) for x in a.only.split(",") if x]
    return a

if __name__ == "__main__":
    a = parse(sys.argv[1:])
    open(a.o, "w").write(gen(a))
```

```python
import sys, argparse

KN = "standalone__moe_arch_mod__sampling_kernel"
WB = 1024*3584*2
XBYTES = 8*32*1024*2

L_B = 0
L_C = 65536
L_X = 98304
XP = 1056
L_H = L_X + 8*XP
HP = 160
L_T = L_H + 8*HP
L_F = L_T + 4
L_END = L_T + 64

W_P = 0
W_Y = 56*8*2048
W_R = W_Y + 256*7168
W_M = W_R + 64*128
W_E = W_M + 256*128
W_S = W_E + 256
W_END = W_S + 1024
W_DIAG = 4 << 20

TAGM = 0x3ff

class G:
    def __init__(s, a):
        s.a = a; s.L = []; s.uid = 0
    def e(s, t): s.L.append("    " + t)
    def lab(s, t): s.L.append(t + ":")
    def u(s, p):
        s.uid += 1; return f"{p}_{s.uid}"
    def stamp(s, k, wait=True):
        if s.a.diag and (k == 0 or not s.a.only or k in s.a.only):
            if not wait:
                s.e("s_memrealtime s[86:87]"); return
            s.e("s_memrealtime s[68:69]")
            s.e("s_waitcnt lgkmcnt(0)")
            s.e(f"s_mov_b32 s{70+k}, s68")

def srd(e, r, lo, hi, n):
    e(f"s_mov_b32 s{r}, {lo}"); e(f"s_mov_b32 s{r+1}, {hi}"); e(f"s_mov_b32 s{r+2}, {n}"); e(f"s_mov_b32 s{r+3}, 0x20000")

def gen(a):
    g = G(a); e = g.e; D = a.depth
    NT = a.nt; ST = a.st; LD = a.ld
    SP = a.special
    PT = a.pretouch + (a.pty == 1)
    MB = 88
    CP = 60
    g.stamp(0, wait=False)
    if (a.hold or a.span) and not a.diag: e("s_memrealtime s[86:87]")
    e("s_load_dwordx16 s[4:19], s[0:1], 0")
    if a.ipf:
        e("s_getpc_b64 s[20:21]")
        g.lab("L_pf_base")
        e("v_lshlrev_b32 v7, 7, v0")
        e("v_cmp_gt_u32 vcc, L_code_end-L_pf_base, v7")
        e("s_and_saveexec_b64 s[22:23], vcc")
        e("s_cbranch_execz L_ipf2")
        if a.ipf < 32:
            e(f"s_cmp_ge_u32 s2, {8*a.ipf}")
            e("s_cbranch_scc1 L_ipf2")
        e(f"global_load_dword v119, v7, s[20:21] {a.ipff}")
        g.lab("L_ipf2")
        e("s_mov_b64 exec, s[22:23]")
    e("v_readfirstlane_b32 s3, v0")
    e("v_and_b32 v0, 63, v0")
    e("s_cmp_ge_u32 s2, 256")
    e("s_cbranch_scc1 L_end")
    if a.diag:
        for k in range(1, 16): e(f"s_mov_b32 s{70+k}, 0")
    e("s_and_b32 s20, s2, 7")
    e("s_lshr_b32 s21, s2, 3")
    e("s_lshr_b32 s3, s3, 6")
    e("s_cmp_eq_u32 s3, 4")
    e("s_cbranch_scc0 L_cmp")
    e("s_setprio 3")
    e("s_sub_u32 s26, s20, 1")
    e("s_lshl_b32 s27, s26, 5")
    e("s_add_u32 s27, s27, s21")
    e("v_lshlrev_b32 v7, 4, v0")
    e("s_lshl_b32 s28, s27, 13")
    e("s_add_u32 s29, s28, 4096")
    e("v_mov_b32 v1, 0")
    e(f"v_mov_b32 v3, {L_T}")
    e("ds_write_b32 v3, v1 offset:4")
    e(f"s_mov_b32 s46, {XBYTES}")
    e("s_mov_b32 s47, 0x20000")
    e("s_movk_i32 s50, 2048")
    e("s_mov_b32 s51, s47")
    e(f"s_mov_b32 s58, {W_END}")
    e("s_mov_b32 s59, s47")
    e(f"s_mov_b32 s30, {W_E}")
    e("s_lshl_b32 s36, s2, 7")
    e(f"s_add_u32 s36, s36, {W_M}")
    if a.pretouch:
        assert SP == 1
        e("s_sub_u32 s37, s27, 28")
    e("s_cmp_lt_u32 s26, 2")
    e("s_waitcnt lgkmcnt(0)")
    e("s_mov_b64 s[44:45], s[4:5]")
    e("s_cbranch_scc0 L_norl")
    e("s_mov_b64 s[48:49], s[6:7]")
    for n in range(8):
        e(f"buffer_load_dwordx4 v[{16+4*n}:{19+4*n}], v7, s[44:47], {'s28' if n < 4 else 's29'} offen offset:{(n%4)*1024} {a.xnt}")
        if n == 0:
            e(f"buffer_load_dwordx4 v[48:51], v7, s[48:51], 0 offen {a.wrnt}")
            e(f"buffer_load_dwordx4 v[52:55], v7, s[48:51], 0 offen offset:1024 {a.wrnt}")
    g.lab("L_norl")
    if a.wsoff:
        e(f"s_add_u32 s56, s18, {a.wsoff}")
        e("s_addc_u32 s57, s19, 0")
    else:
        e("s_mov_b64 s[56:57], s[18:19]")
    e("s_load_dword s33, s[56:57], s30")
    if a.pretouch:
        e("s_load_dword s34, s[56:57], s36")
        e("s_cmp_lt_u32 s37, 4")
        e("s_cbranch_scc0 L_nopt")
        e("v_lshlrev_b32 v13, 7, v0")
        e(f"s_mov_b32 s37, {W_R}")
        e("buffer_load_dword v2, v13, s[56:59], s37 offen")
        g.lab("L_nopt")
    e("s_barrier")
    if a.sonly:
        if a.sonly > 1: e(f"s_sleep {a.sonly}")
        e("ds_write_b32 v3, v3 offset:4")
        e("s_branch L_diag")
    e("s_branch L_ctl")
    g.lab("L_cmp")
    def decode(t):
        e("s_mov_b64 s[24:25], 0")
        e("s_and_b32 s23, s21, 3")
        e("s_lshr_b32 s27, s21, 2")
        e(f"s_cmp_eq_u32 s20, {SP}")
        e(f"s_cbranch_scc1 L_special{t}")
        e(f"s_cmp_gt_u32 s20, {SP}")
        e("s_subb_u32 s22, s20, 0")
        e("s_cmp_lt_u32 s21, 12")
        e(f"s_cbranch_scc1 L_dec{t}")
        e("s_sub_u32 s27, s27, 1")
        e("s_cmp_ge_u32 s21, 20")
        e(f"s_cbranch_scc1 L_dec{t}")
        e("s_mov_b32 s27, 3")
        e("s_sub_u32 s23, s21, 12")
        e("s_mov_b32 s24, 1")
        e(f"s_branch L_dec{t}")
        g.lab(f"L_special{t}")
        e("s_mov_b32 s22, s27")
        e("s_mov_b32 s27, 7")
        e("s_cmp_ge_u32 s21, 28")
        e("s_cselect_b32 s25, 1, 0")
        g.lab(f"L_dec{t}")
        e("s_lshl3_add_u32 s22, s22, s27")
        e("s_and_b32 s41, s23, s24")
    decode("c")
    e("s_cmp_eq_u32 s25, 1")
    e("s_cbranch_scc1 L_end")
    e("v_lshrrev_b32 v5, 3, v0")
    e("v_lshrrev_b32 v2, 4, v0")
    e("v_lshl_add_u32 v1, v5, 1, v5") if False else None
    e("v_and_b32 v1, 3, v5")
    e("v_lshrrev_b32 v3, 5, v0")
    e("v_lshl_add_u32 v1, v3, 3, v1")
    e("v_lshlrev_b32 v3, 1, v2")
    e("v_xor_b32 v3, v3, v0")
    e("v_and_b32 v3, 7, v3")
    e("v_lshlrev_b32 v3, 4, v3")
    e("v_mul_u32_u24 v4, 7168, v1")
    e("v_add_u32 v4, v4, v3")
    e("v_lshl_add_u32 v5, v5, 11, v3")
    e("s_and_b32 s28, s3, 1")
    e("s_lshl_b32 s28, s28, 4")
    e("s_lshr_b32 s29, s3, 1")
    e("s_lshl_b32 s29, s29, 2")
    e("s_add_u32 s28, s28, s29")
    e("s_add_u32 s30, s24, 1")
    e("s_lshl_b32 s31, s24, 1")
    e("s_or_b32 s31, s31, 1")
    e("s_sub_u32 s32, 9, s24")
    e("s_lshr_b32 s33, s23, s30")
    e("s_and_b32 s34, s23, s31")
    e("s_lshl_b32 s35, s34, s32")
    e("s_add_u32 s36, s35, s28")
    e("s_mul_i32 s36, s36, 7168")
    e("s_lshl_b32 s37, s22, 7")
    e("s_add_u32 s36, s36, s37")
    if a.lin:
        e("v_lshlrev_b32 v4, 4, v0")
        e("v_mov_b32 v5, v4")
        e("s_lshl_b32 s36, s22, 17")
        e("s_add_u32 s37, s32, 7")
        e("s_lshl_b32 s37, s34, s37")
        e("s_add_u32 s36, s36, s37")
        e("s_lshl_b32 s37, s3, 10")
        e("s_add_u32 s36, s36, s37")
    e("s_lshl_b32 m0, s3, 10")
    e(f"s_mov_b32 s46, {WB}")
    e("s_mov_b32 s47, 0x20000")
    e("s_cmp_eq_u32 s33, 1")
    e("s_waitcnt lgkmcnt(0)")
    e("s_cselect_b32 s44, s10, s8")
    e("s_cselect_b32 s45, s11, s9")
    e(f"v_mov_b32 v13, {L_T}")
    DS = a.sdepth or max(2, (D+1)//2)
    e("s_cmp_eq_u32 s24, 1")
    e(f"s_cselect_b32 s43, {DS}, {D}")
    e("s_barrier")
    g.lab("L_b0")
    e(f"buffer_load_dwordx4 v4, s[44:47], s36 offen {NT} lds")
    e(f"s_add_u32 s36, s36, {4096 if a.lin else 32*7168}")
    e("s_add_u32 m0, m0, 4096")
    e("s_sub_u32 s43, s43, 1")
    e("s_cmp_lg_u32 s43, 0")
    e("s_cbranch_scc1 L_b0")
    e("s_cmp_eq_u32 s24, 1")
    e("s_cbranch_scc1 L_slow")

    def cload():
        e(f"buffer_load_dwordx4 v5, s[48:51], s39 offen {NT} lds")
        e(f"s_add_u32 s39, s39, {1024 if a.lin else 8*2048}")
        e("s_add_u32 m0, m0, 1024")

    def bphase(nb, d, tag):
        n1 = nb - a.tail*nb//16
        half = nb//2
        def bload():
            e(f"buffer_load_dwordx4 v4, s[44:47], s36 offen {NT} lds")
            e(f"s_add_u32 s36, s36, {4096 if a.lin else 32*7168}")
            e("s_add_u32 m0, m0, 4096")
        srd(e, 48, "s12", "s13", WB)
        e("s_lshr_b32 s38, s23, s24")
        e("s_lshl_b32 s38, s38, 2")
        e("s_add_u32 s38, s38, s3")
        e("s_lshl_b32 s39, s22, 17")
        e(f"s_lshl_b32 s40, s38, {13 if a.lin else 7}")
        e("s_add_u32 s39, s39, s40")
        e("s_lshl_b32 s42, s3, 13")
        e(f"s_add_u32 s42, s42, {L_C}")
        e("v_lshrrev_b32 v1, 5, v0")
        e("v_and_b32 v3, 31, v0")
        e("v_bfe_u32 v6, v0, 2, 3")
        e("v_lshlrev_b32 v7, 7, v6")
        e("v_lshl_add_u32 v7, v1, 10, v7")
        e("v_lshrrev_b32 v6, 1, v6")
        e("v_lshl_add_u32 v7, v6, 5, v7")
        e("v_and_b32 v6, 3, v0")
        e("v_lshl_add_u32 v7, v6, 3, v7")
        e("s_lshl_b32 s43, s3, 5")
        e("v_xor_b32 v6, s43, v7")
        e("v_add_u32 v7, s42, v7")
        e("v_and_b32 v8, 7, v0")
        e("v_bfe_u32 v9, v0, 3, 1")
        e(f"v_mul_u32_u24 v10, {XP}, v8")
        e("v_lshl_add_u32 v10, v2, 4, v10")
        e(f"v_mul_u32_u24 v11, {half*64}, v9")
        e("v_add_u32 v10, v10, v11")
        if nb == 8:
            e("s_and_b32 s43, s34, 1")
            e("s_lshl_b32 s43, s43, 9")
            e(f"s_add_u32 s43, s43, {L_X}")
            e("v_add_u32 v10, s43, v10")
        else:
            e(f"v_add_u32 v10, {L_X}, v10")
        e("s_lshl_b32 s60, s22, 3")
        e("s_lshl_b32 s52, s33, 2")
        e("s_add_u32 s52, s52, s60")
        e("s_add_u32 s52, s52, s34")
        e("s_lshl_b32 s52, s52, 11")
        e("s_lshl_b32 s53, s3, 9")
        e("s_add_u32 s52, s52, s53")
        e(f"s_add_u32 s56, s18, {a.wsoff}")
        e("s_addc_u32 s57, s19, 0")
        e(f"s_mov_b32 s58, {W_END}")
        e("s_mov_b32 s59, 0x20000")
        e("v_lshlrev_b32 v14, 6, v8")
        e("v_lshl_add_u32 v14, v2, 4, v14")
        if a.ptp:
            e("s_add_u32 s62, s56, s52")
            e("s_addc_u32 s63, s57, 0")
            for k in range(0, 512, a.ptp):
                e(f"s_load_dword s61, s[62:63], {k}")
        e(f"v_mov_b32 v15, {TAGM}")
        sk = g.u("L_noc")
        XF = 16; WF = 48
        def wread(k):
            e(f"ds_read_b64_tr_b16 v[{WF+4*k}:{WF+4*k+1}], v6 offset:{k*4096}")
            e(f"ds_read_b64_tr_b16 v[{WF+4*k+2}:{WF+4*k+3}], v6 offset:{k*4096+2048}")
        def mfma(k):
            acc = 112 if k < half else 116
            xf = XF + 4*(k % half)
            cin = "0" if k in (0, half) else f"v[{acc}:{acc+3}]"
            e(f"v_mfma_f32_16x16x32_bf16 v[{acc}:{acc+3}], v[{WF+4*k}:{WF+4*k+3}], v[{xf}:{xf+3}], {cin}")
        if a.late:
            e(f"s_mov_b32 s35, {nb - d}")
            e(f"s_bitcmp1_b32 {a.late}, s20")
            e(f"s_cbranch_scc1 L_bg{tag}")
        npre = min(a.npre * nb // 16, nb - d - 1)
        if npre > 0:
            e(f"s_mov_b32 s35, {npre}")
            g.lab(f"L_bp{tag}")
            e(f"s_waitcnt vmcnt({d-1})")
            bload()
            e("s_sub_u32 s35, s35, 1")
            e("s_cmp_lg_u32 s35, 0")
            e(f"s_cbranch_scc1 L_bp{tag}")
        e(f"s_mov_b32 s35, {nb - d - max(npre, 0)}")
        e(f"s_mov_b32 s37, {a.spin*8}")
        def check(back, out):
            e("s_waitcnt lgkmcnt(0)")
            e("v_readfirstlane_b32 s43, v12")
            e("s_sub_u32 s37, s37, 1")
            e(f"s_cbranch_scc1 {out}")
            e("s_cmp_eq_u32 s43, 0")
            e(f"s_cbranch_scc1 {back}")
        g.lab(f"L_bl{tag}")
        e("ds_read_b32 v12, v13 offset:4")
        e(f"s_waitcnt vmcnt({d-1})")
        bload()
        e("s_sub_u32 s35, s35, 1")
        e("s_cmp_eq_u32 s35, 0")
        e(f"s_cbranch_scc1 L_cl0{tag}")
        check(f"L_bl{tag}", f"L_bg{tag}")
        g.lab(f"L_bg{tag}")
        bload()
        e("s_sub_u32 s35, s35, 1")
        e("s_cmp_lg_u32 s35, 0")
        e(f"s_cbranch_scc1 L_bg{tag}")
        g.lab(f"L_cl0{tag}")
        e("s_mov_b32 m0, s42")
        ncp = a.cpre
        if nb == 8:
            e("s_cmp_eq_u32 s41, 1"); e(f"s_cbranch_scc1 {sk}f")
        early = min(ncp, d - (nb - n1))
        for j in range(max(early, 0)):
            e(f"s_waitcnt vmcnt({d-1})")
            cload()
        early = max(early, 0)
        g.stamp(1)
        if a.sonly:
            for j in range(early, ncp):
                e(f"s_waitcnt vmcnt({d-1})")
                cload()
            e(f"s_waitcnt vmcnt({ncp})")
            g.stamp(2)
            for j in range(ncp, 8): cload()
            e("s_branch L_diag")
        e(f"s_waitcnt vmcnt({nb - n1 + early})")
        if nb == 8:
            e(f"s_branch {sk}g")
            g.lab(f"{sk}f")
            if a.sonly: e("s_branch L_diag")
            e(f"s_waitcnt vmcnt({nb - n1})")
            g.lab(f"{sk}g")
        g.stamp(2)
        e("s_barrier")
        g.stamp(3)
        for k in range(n1): wread(k)
        mid = min(ncp, early + a.cmid)
        if nb == 8:
            e("s_cmp_eq_u32 s41, 1"); e(f"s_cbranch_scc1 {sk}h")
        for j in range(early, mid): cload()
        if nb == 8: g.lab(f"{sk}h")
        e("s_waitcnt lgkmcnt(0)")
        g.stamp(4)
        e("s_barrier")
        g.stamp(5)
        for f in range(half):
            e(f"ds_read_b128 v[{XF+4*f}:{XF+4*f+3}], v10 offset:{f*64}")
        e("ds_read_b32 v12, v13")
        nA = n1//2
        for k in range(nA):
            e(f"s_waitcnt lgkmcnt({max(half - k, 0)})")
            mfma(k)
        if nb == 8:
            e("s_cmp_eq_u32 s41, 1"); e(f"s_cbranch_scc1 {sk}d")
        for j in range(mid, ncp):
            e(f"s_waitcnt vmcnt({d-1})")
            cload()
        e(f"s_waitcnt vmcnt({ncp})")
        if nb == 8:
            e(f"s_branch {sk}e")
            g.lab(f"{sk}d")
            e("s_waitcnt vmcnt(0)")
            g.lab(f"{sk}e")
        e("s_waitcnt lgkmcnt(0)")
        e("s_barrier")
        for k in range(n1, nb): wread(k)
        if a.clate == 0:
            if nb == 8:
                e("s_cmp_eq_u32 s41, 1"); e(f"s_cbranch_scc1 {sk}i")
            for j in range(ncp, 8): cload()
            if nb == 8: g.lab(f"{sk}i")
        for k in range(nA, n1): mfma(k)
        for k in range(n1, nb):
            e(f"s_waitcnt lgkmcnt({2*(nb-1-k)})")
            mfma(k)

    bphase(16, D, "n")
    e("s_branch L_pub")
    g.lab("L_slow")
    bphase(8, DS, "s")
    g.lab("L_pub")
    e("s_lshl_b32 s62, s60, 11")
    e("s_lshl_b32 s53, s3, 7")
    e("s_add_u32 s62, s62, s53")
    e("s_add_u32 s63, s62, 8192")
    e("s_add_u32 s54, s62, 4096")
    e("s_add_u32 s55, s63, 4096")
    e("s_nop 1")
    for r in range(4):
        e(f"v_add_f32_dpp v{112+r}, v{116+r}, v{112+r} row_ror:8 row_mask:0xf bank_mask:0xf")
    e("s_mov_b32 exec_lo, 0x00ff00ff")
    e("s_mov_b32 exec_hi, 0x00ff00ff")
    for r in range(4):
        e(f"v_bfi_b32 v{112+r}, v15, v12, v{112+r}")
    e(f"buffer_store_dwordx4 v[112:115], v14, s[56:59], s52 offen {ST}")
    e("s_mov_b64 exec, -1")
    g.stamp(6)
    e("s_cmp_eq_u32 s41, 1")
    e("s_cbranch_scc1 L_cdone")
    NL = 8 - a.cpre if a.clate else 0
    if a.clate:
        for j in range(a.cpre, 8): cload()
    e("v_bfe_u32 v14, v0, 3, 2")
    e("v_lshlrev_b32 v14, 9, v14")
    e("v_lshl_add_u32 v14, v1, 6, v14")
    e("v_lshl_add_u32 v14, v8, 3, v14")
    e(f"v_mul_u32_u24 v16, {HP}, v8")
    e("v_lshl_add_u32 v16, v2, 4, v16")
    e(f"v_add_u32 v16, {L_H}, v16")
    e("s_lshl_b32 s60, s3, 1")
    e("v_add_u32 v17, s60, v1")
    e(f"v_mul_u32_u24 v17, {HP}, v17")
    e("v_bfe_u32 v18, v0, 4, 1")
    e("v_lshl_add_u32 v17, v18, 6, v17")
    e("v_bfe_u32 v18, v0, 1, 2")
    e("v_lshl_add_u32 v17, v18, 4, v17")
    e("v_lshl_add_u32 v17, v9, 3, v17")
    e("v_and_b32 v18, 1, v0")
    e("v_lshl_add_u32 v17, v18, 2, v17")
    e(f"v_add_u32 v17, {L_H}, v17")
    for tt in range(1, 4): e(f"v_xor_b32 v{36+tt}, {32*tt}, v7")
    e("s_mov_b32 s60, 229376")
    e("v_mul_lo_u32 v19, v8, s60")
    e("v_lshl_add_u32 v19, v9, 6, v19")
    e("v_lshl_add_u32 v19, v2, 4, v19")
    e(f"s_mul_i32 s52, s38, {2*7168}")
    e("s_lshl_b32 s53, s22, 7")
    e("s_add_u32 s52, s52, s53")
    e(f"s_add_u32 s52, s52, {W_Y}")
    e("s_add_u32 s53, s52, 7168")
    e(f"s_mov_b32 s61, {a.spin}")
    def gloads(slow):
        e(f"buffer_load_dwordx2 v[20:21], v14, s[56:59], s62 offen {LD}")
        e(f"buffer_load_dwordx2 v[22:23], v14, s[56:59], s62 offen offset:2048 {LD}")
        e(f"buffer_load_dwordx2 v[24:25], v14, s[56:59], s63 offen {LD}")
        e(f"buffer_load_dwordx2 v[26:27], v14, s[56:59], s63 offen offset:2048 {LD}")
        if slow:
            e(f"buffer_load_dwordx2 v[28:29], v14, s[56:59], s54 offen {LD}")
            e(f"buffer_load_dwordx2 v[30:31], v14, s[56:59], s54 offen offset:2048 {LD}")
            e(f"buffer_load_dwordx2 v[32:33], v14, s[56:59], s55 offen {LD}")
            e(f"buffer_load_dwordx2 v[34:35], v14, s[56:59], s55 offen offset:2048 {LD}")
    def creads():
        for ks in range(2):
            for tt in range(4):
                r = 48 + 16*ks + 4*tt
                av = 7 if tt == 0 else 36 + tt
                e(f"ds_read_b64_tr_b16 v[{r}:{r+1}], v{av} offset:{ks*4096}")
                e(f"ds_read_b64_tr_b16 v[{r+2}:{r+3}], v{av} offset:{ks*4096+2048}")
    def gather(slow):
        t = "s" if slow else "n"
        n = 8 if slow else 4
        if a.gsleep: e(f"s_sleep {a.gsleep}")
        else: e(f"s_waitcnt vmcnt({NL if a.gack else 1 + a.gearly})")
        g.stamp(7)
        gloads(slow)
        e(f"s_waitcnt vmcnt({n if NL else n+1})")
        g.stamp(11)
        creads()
        if a.diag and (not a.only or 12 in a.only):
            e(f"s_waitcnt vmcnt({n})")
            g.stamp(12)
            e(f"s_waitcnt vmcnt(0)")
            g.stamp(13)
        e(f"s_branch L_gc{t}")
        g.lab(f"L_g{t}")
        if a.gretry: e(f"s_sleep {a.gretry}")
        gloads(slow)
        g.lab(f"L_gc{t}")
        e("s_waitcnt vmcnt(0)")
        e("v_xor_b32 v18, v20, v12")
        for r in range(21, 20 + 2*n):
            e(f"v_bitop3_b32 v18, v18, v{r}, v12 bitop3:0xf6")
        e("v_and_b32 v18, v15, v18")
        e("v_cmp_ne_u32 vcc, 0, v18")
        e(f"s_cbranch_vccz L_gok{t}")
        e("s_sub_u32 s61, s61, 1")
        e("s_cmp_lg_u32 s61, 0")
        e(f"s_cbranch_scc1 L_g{t}")
        g.lab(f"L_gok{t}")
        if slow:
            e("v_pk_add_f32 v[20:21], v[20:21], v[28:29]")
            e("v_pk_add_f32 v[22:23], v[22:23], v[30:31]")
            e("v_pk_add_f32 v[24:25], v[24:25], v[32:33]")
            e("v_pk_add_f32 v[26:27], v[26:27], v[34:35]")
    e("s_cmp_eq_u32 s24, 1")
    e("s_cbranch_scc0 L_gnorm")
    gather(True)
    e("s_branch L_act")
    g.lab("L_gnorm")
    gather(False)
    g.lab("L_act")
    g.stamp(8)
    if a.diag: e(f"s_sub_u32 s84, {a.spin+1}, s61")
    e("v_add_f32 v20, v20, v22"); e("v_add_f32 v21, v21, v23")
    e("v_add_f32 v24, v24, v26"); e("v_add_f32 v25, v25, v27")
    e("v_cvt_pk_bf16_f32 v22, v20, v21")
    e("v_cvt_pk_bf16_f32 v26, v24, v25")
    e("v_lshlrev_b32 v20, 16, v22")
    e("v_and_b32 v21, 0xffff0000, v22")
    e("v_mul_f32 v28, 0xbfb8aa3b, v20")
    e("v_mul_f32 v29, 0xbfb8aa3b, v21")
    e("v_exp_f32 v28, v28")
    e("v_exp_f32 v29, v29")
    e("v_lshlrev_b32 v24, 16, v26")
    e("v_add_f32 v28, 1.0, v28")
    e("v_add_f32 v29, 1.0, v29")
    e("v_rcp_f32 v28, v28")
    e("v_rcp_f32 v29, v29")
    e("v_and_b32 v25, 0xffff0000, v26")
    e("v_mul_f32 v20, v20, v28")
    e("v_mul_f32 v21, v21, v29")
    e("v_cvt_pk_bf16_f32 v22, v20, v21")
    e("v_lshlrev_b32 v20, 16, v22")
    e("v_and_b32 v21, 0xffff0000, v22")
    e("v_mul_f32 v20, v20, v24")
    e("v_mul_f32 v21, v21, v25")
    e("v_cvt_pk_bf16_f32 v22, v20, v21")
    e("ds_write_b32 v17, v22")
    e("v_cmp_eq_u32 vcc, 1, v9")
    e("s_waitcnt lgkmcnt(0)")
    e("s_barrier")
    e("ds_read_b128 v[20:23], v16")
    e("ds_read_b128 v[24:27], v16 offset:64")
    e("s_waitcnt lgkmcnt(1)")
    for tt in range(4):
        e(f"v_mfma_f32_16x16x32_bf16 v[{80+4*tt}:{83+4*tt}], v[{48+4*tt}:{51+4*tt}], v[20:23], 0")
    e("s_waitcnt lgkmcnt(0)")
    for tt in range(4):
        e(f"v_mfma_f32_16x16x32_bf16 v[{80+4*tt}:{83+4*tt}], v[{64+4*tt}:{67+4*tt}], v[24:27], v[{80+4*tt}:{83+4*tt}]")
    e("s_nop 5")
    for r in range(4):
        e(f"v_cndmask_b32 v{80+r}, v{80+r}, v{84+r}, vcc")
    for r in range(4):
        e(f"v_bfi_b32 v{80+r}, v15, v12, v{80+r}")
    e(f"buffer_store_dwordx4 v[80:83], v19, s[56:59], s52 offen {ST}")
    for r in range(4):
        e(f"v_cndmask_b32 v{88+r}, v{88+r}, v{92+r}, vcc")
    for r in range(4):
        e(f"v_bfi_b32 v{88+r}, v15, v12, v{88+r}")
    e(f"buffer_store_dwordx4 v[88:91], v19, s[56:59], s53 offen {ST}")
    g.stamp(9)
    if a.rdelay < 0:
        e("s_waitcnt vmcnt(0)")
    e("s_barrier")
    g.lab("L_cdone")
    if a.diag:
        e("s_branch L_diag")
    e("s_endpgm")

    g.lab("L_ctl")
    g.stamp(1)
    e("s_mov_b32 s31, s27")
    decode("k")
    e("s_mov_b32 s27, s31")
    e("s_add_u32 s52, s56, s36")
    e("s_addc_u32 s53, s57, 0")
    if a.pty == 1:
        e(f"s_mul_i32 s54, s2, 7168")
        e(f"s_add_u32 s54, s54, {W_Y}")
        e("v_lshlrev_b32 v59, 7, v0")
        e("v_cmp_gt_u32 vcc, 56, v0")
        e("s_and_saveexec_b64 s[42:43], vcc")
        e(f"buffer_load_dword v58, v59, s[56:59], s54 offen {a.ptf}")
        e("s_mov_b64 exec, -1")
    e("s_lshr_b32 s37, s23, s24")
    e("s_and_b32 s37, s37, 1")
    e("s_lshl_b32 s37, s37, 10")
    e("v_add_u32 v84, s37, v7")
    for b in range(1, 8):
        e(f"v_add_u32 v{84+b}, {b*65536}, v84")
    e("s_waitcnt lgkmcnt(0)")
    e("s_add_u32 s33, s33, 1")
    e("v_mov_b32 v6, s33")
    e("s_cmp_lt_u32 s26, 2")
    e("s_cbranch_scc1 L_route")
    e("s_branch L_poll")
    g.lab("L_route")
    e("s_and_b32 s30, s27, 7")
    e("s_lshl_b32 s30, s30, 13")
    e(f"s_sub_u32 s30, {31 << 11}, s30")
    e("s_lshl_b32 s31, s27, 7")
    e(f"s_add_u32 s31, s31, {W_R}")
    for tk in range(4):
        for hlf in range(2):
            n = 2*tk + hlf
            e(f"s_waitcnt vmcnt({7 - n + (1 if n == 0 else 0)})")
            for r in range(4):
                src = "0" if (hlf == 0 and r == 0) else f"v{8+tk}"
                e(f"v_dot2_f32_bf16 v{8+tk}, v{16+4*n+r}, v{48+4*hlf+r}, {src}")
    g.stamp(12)
    e("s_nop 1")
    e("s_nop 0")
    e("v_permlane32_swap_b32 v8, v9")
    e("v_permlane32_swap_b32 v10, v11")
    e("v_bfe_u32 v13, v0, 4, 1")
    e("v_add_f32 v8, v8, v9")
    e("v_add_f32 v10, v10, v11")
    e("v_lshrrev_b32 v14, 5, v0")
    e("v_lshl_add_u32 v13, v13, 1, v14")
    e("v_permlane16_swap_b32 v8, v10")
    e("v_lshlrev_b32 v13, 11, v13")
    e("v_add_f32 v8, v8, v10")
    e("v_sub_u32 v12, s30, v13")
    for sh in (8, 4, 2, 1):
        e("s_nop 0" if sh == 8 else "s_nop 1")
        e(f"v_add_f32_dpp v8, v8, v8 row_ror:{sh} row_mask:0xf bank_mask:0xf")
    e("s_movk_i32 s32, 0x7ff")
    e("v_cvt_pk_bf16_f32 v9, v8, v8")
    e("v_cmp_u_f32 vcc, v8, v8")
    e("v_and_or_b32 v12, v6, s32, v12")
    e("v_ashrrev_i32 v10, 31, v9")
    e("v_or_b32 v10, 0x80000000, v10")
    e("v_xor_b32 v9, v9, v10")
    e("v_cndmask_b32 v9, v9, 0, vcc")
    e("v_and_b32 v9, 0xffff0000, v9")
    e("v_or_b32 v8, v9, v12")
    e("v_or_b32 v9, v9, v12")
    e("s_nop 1")
    e("v_permlane32_swap_b32 v8, v9")
    e("s_nop 0")
    e("v_max_u32 v8, v8, v9")
    e("v_max_u32 v9, v8, v9")
    e("s_nop 1")
    e("v_permlane16_swap_b32 v8, v9")
    e("v_mov_b32 v11, v6")
    e("v_max_u32 v10, v8, v9")
    e("s_mov_b64 exec, 1")
    e(f"buffer_store_dwordx2 v[10:11], v1, s[56:59], s31 offen {ST}")
    e("s_mov_b64 exec, -1")
    g.stamp(2)
    e("s_cmp_eq_u32 s25, 1")
    e("s_cbranch_scc0 L_poll")
    e("v_lshlrev_b32 v13, 7, v0")
    e(f"s_mov_b32 s30, {W_R}")
    e("v_and_b32 v14, 1, v0")
    e("v_lshlrev_b32 v92, 7, v14")
    for r in range(1, 4):
        e(f"v_add_u32 v{92+r}, {32*r}, v92")
    e("v_lshrrev_b32 v15, 1, v0")
    e("v_lshlrev_b32 v15, 7, v15")
    e("v_lshl_add_u32 v15, v14, 4, v15")
    e("s_sub_u32 s31, s21, 28")
    e("s_lshl_b32 s31, s31, 13")
    e(f"s_add_u32 s31, s31, {W_M}")
    e("s_add_u32 s32, s31, 4096")
    e(f"s_mov_b32 s34, {a.spin}")
    if a.agdelay < 0: e("s_waitcnt vmcnt(0)")
    elif a.agdelay: e(f"s_sleep {a.agdelay}")
    NP = a.npoll
    for k in range(NP-1):
        e(f"buffer_load_dwordx2 v[{100+2*k}:{101+2*k}], v13, s[56:59], s30 offen {LD}")
        if a.psleep: e(f"s_sleep {a.psleep}")
    g.lab("L_ag")
    for k in range(NP):
        kk = (k+NP-1) % NP
        e(f"buffer_load_dwordx2 v[{100+2*kk}:{101+2*kk}], v13, s[56:59], s30 offen {LD}")
        e(f"s_waitcnt vmcnt({NP-1})")
        e(f"v_cmp_ne_u32 vcc, v{101+2*k}, v6")
        e(f"v_mov_b32 v8, v{100+2*k}")
        e("s_cbranch_vccz L_agok")
        if a.psleep and NP > 1: e(f"s_sleep {a.psleep}")
    e("s_sub_u32 s34, s34, 1")
    e("s_cmp_lg_u32 s34, 0")
    e("s_cbranch_scc1 L_ag")
    g.lab("L_agok")
    g.stamp(11)
    if a.diag: e(f"s_sub_u32 s85, {a.spin+1}, s34")
    e("s_nop 0")
    e("v_max_u32_dpp v8, v8, v8 quad_perm:[1,0,3,2] row_mask:0xf bank_mask:0xf")
    e("s_nop 1")
    e("v_max_u32_dpp v8, v8, v8 quad_perm:[2,3,0,1] row_mask:0xf bank_mask:0xf")
    e("s_nop 1")
    e("v_max_u32_dpp v8, v8, v8 row_half_mirror row_mask:0xf bank_mask:0xf")
    e("v_xor_b32 v8, 0xf800, v8")
    for r in range(4):
        e(f"ds_bpermute_b32 v{96+r}, v{92+r}, v8")
    e("s_waitcnt lgkmcnt(0)")
    e(f"buffer_store_dwordx4 v[96:99], v15, s[56:59], s31 offen {ST}")
    e(f"buffer_store_dwordx4 v[96:99], v15, s[56:59], s32 offen {ST}")
    g.stamp(8)
    g.lab("L_poll")
    e(f"v_and_b32 v12, {TAGM}, v6")
    e("ds_write_b32 v3, v12")
    if a.span:
        e("s_lshl_b32 s34, s2, 2")
        e(f"s_add_u32 s34, s34, {W_S}")
        e("v_mov_b32 v4, s86")
        e("s_mov_b64 exec, 1")
        e("buffer_store_dword v4, v1, s[56:59], s34 offen sc1")
        e("s_mov_b64 exec, -1")
    e(f"s_mov_b32 s34, {a.spin*4}")
    e("s_and_b32 s36, s33, 0x7ff")
    e("s_mov_b32 s37, s36")
    if a.freerun:
        e("s_not_b64 s[38:39], s[36:37]")
        for k in range(4): e(f"s_mov_b64 s[{MB+2*k}:{MB+2*k+1}], s[38:39]")
    g.lab("L_pl")
    e(f"s_load_dwordx8 s[{MB}:{MB+7}], s[52:53], 0 glc")
    if a.freerun: e(f"s_sleep {a.freerun}")
    else: e("s_waitcnt lgkmcnt(0)")
    for k in range(4): e(f"s_mov_b64 s[{CP+2*k}:{CP+2*k+1}], s[{MB+2*k}:{MB+2*k+1}]")
    e(f"s_xor_b64 s[38:39], s[{CP}:{CP+1}], s[36:37]")
    e(f"s_xor_b64 s[42:43], s[{CP+2}:{CP+3}], s[36:37]")
    e("s_or_b64 s[38:39], s[38:39], s[42:43]")
    e(f"s_xor_b64 s[42:43], s[{CP+4}:{CP+5}], s[36:37]")
    e("s_or_b64 s[38:39], s[38:39], s[42:43]")
    e(f"s_xor_b64 s[42:43], s[{CP+6}:{CP+7}], s[36:37]")
    e("s_or_b64 s[38:39], s[38:39], s[42:43]")
    e("s_or_b32 s38, s38, s39")
    e("s_and_b32 s38, s38, 0x7ff")
    e("s_cbranch_scc0 L_pok")
    e("s_sub_u32 s34, s34, 1")
    e("s_cmp_lg_u32 s34, 0")
    e("s_cbranch_scc1 L_pl")
    g.lab("L_pok")
    e("s_cmp_eq_u32 s25, 1")
    e("s_cbranch_scc1 L_nox")
    e(f"s_mov_b32 m0, {L_X}")
    for b in range(8):
        e(f"s_and_b32 s38, s{CP+b}, 0xf800")
        e(f"buffer_load_dwordx4 v{84+b}, s[44:47], s38 offen {a.xsnt} lds")
        if b < 7:
            e(f"s_add_u32 m0, m0, {XP}")
    e("ds_write_b32 v3, v3 offset:4")
    g.stamp(3)
    e("s_barrier")
    g.lab("L_nox")
    e("s_lshr_b32 s38, s2, 5")
    e("s_mov_b32 m0, s38")
    e("s_lshl_b32 s38, s38, 16")
    e(f"s_movrels_b32 s40, s{CP}")
    e("s_and_b32 s39, s40, 0xf800")
    e("s_add_u32 s39, s39, s38")
    e("s_and_b32 s38, s2, 31")
    e("s_lshl_b32 s38, s38, 6")
    e("s_add_u32 s39, s39, s38")
    e("v_and_b32 v8, 7, v0")
    e("v_lshlrev_b32 v8, 3, v8")
    e("v_bfe_u32 v9, v0, 4, 1")
    e("v_lshl_add_u32 v8, v9, 2, v8")
    e("v_lshrrev_b32 v9, 5, v0")
    e("v_lshl_add_u32 v8, v9, 1, v8")
    e("s_cmp_eq_u32 s25, 1")
    e("s_cbranch_scc1 L_nobar")
    e("s_waitcnt vmcnt(0) lgkmcnt(0)")
    g.stamp(4)
    e("s_barrier")
    e("s_barrier")
    g.lab("L_nobar")
    e(f"buffer_load_ushort v10, v8, s[44:47], s39 offen {a.xsnt}")
    e(f"s_mul_i32 s54, s2, 7168")
    e(f"s_add_u32 s54, s54, {W_Y}")
    if a.pty == 2:
        e("v_lshlrev_b32 v59, 7, v0")
        e("v_cmp_gt_u32 vcc, 56, v0")
        e("s_and_saveexec_b64 s[42:43], vcc")
        e(f"buffer_load_dword v58, v59, s[56:59], s54 offen {a.ptf}")
        e("s_mov_b64 exec, -1")
    srd(e, 48, "s14", "s15", XBYTES)
    e("s_cmp_lt_u32 s26, 2")
    e("s_cbranch_scc0 L_nocopy")
    e("s_lshr_b32 m0, s27, 3")
    e("s_and_b32 s30, s27, 7")
    e(f"s_movrels_b32 s31, s{CP}")
    e("s_lshl_b32 s30, s30, 2")
    e("s_bfe_u32 s31, s31, 0x5000b")
    e("s_sub_u32 s31, s31, s30")
    e("s_mov_b32 s32, 0x7f807f80")
    e("s_mov_b32 s35, 0x00400040")
    for tk in range(4):
        e(f"s_cmp_eq_u32 s31, {tk}")
        e(f"s_cbranch_scc1 L_cp{tk}")
        for n in (2*tk, 2*tk+1):
            for r in range(4):
                v = 16+4*n+r
                e(f"v_and_b32 v48, s32, v{v}")
                e("v_add_u32 v48, 0x00800080, v48")
                e("v_lshrrev_b32 v48, 9, v48")
                e(f"v_and_or_b32 v{v}, v48, s35, v{v}")
            e(f"buffer_store_dwordx4 v[{16+4*n}:{19+4*n}], v7, s[48:51], {'s28' if n < 4 else 's29'} offen offset:{(n%4)*1024} {a.ost}")
        g.lab(f"L_cp{tk}")
    g.lab("L_nocopy")
    e("v_mov_b32 v11, s40")
    e("v_ashrrev_i32 v13, 31, v11")
    e("v_not_b32 v13, v13")
    e("v_or_b32 v13, 0x80000000, v13")
    e("v_xor_b32 v11, v11, v13")
    e("v_and_b32 v11, 0xffff0000, v11")
    e("v_mul_f32 v11, 0xbfb8aa3b, v11")
    e("v_exp_f32 v11, v11")
    e(f"s_mul_i32 s30, s2, 7168")
    e("v_add_f32 v11, 1.0, v11")
    e("v_rcp_f32 v11, v11")
    e(f"s_add_u32 s30, s30, {W_Y}")
    e("v_cvt_pk_bf16_f32 v11, v11, v11")
    e("s_add_u32 s31, s30, 4096")
    e("v_and_b32 v11, 0xffff0000, v11")
    e("s_or_b32 s41, s41, s25")
    e("s_cmp_eq_u32 s41, 1")
    e("s_cbranch_scc1 L_hint")
    e("s_barrier")
    e("s_barrier")
    if a.rdelay > 0: e(f"s_sleep {a.rdelay}")
    e("s_branch L_red")
    g.lab("L_hint")
    e(f"s_add_u32 s32, s30, {a.hintg*128}")
    e("s_add_u32 s52, s56, s32")
    e("s_addc_u32 s53, s57, 0")
    e(f"s_mov_b32 s34, {a.spin}")
    e(f"s_and_b32 s36, s33, {TAGM}")
    g.lab("L_hl")
    e("s_load_dword s35, s[52:53], 0 glc")
    e("s_waitcnt lgkmcnt(0)")
    e(f"s_and_b32 s35, s35, {TAGM}")
    e("s_cmp_eq_u32 s35, s36")
    e("s_cbranch_scc1 L_red")
    e("s_sub_u32 s34, s34, 1")
    e("s_cmp_lg_u32 s34, 0")
    e("s_cbranch_scc1 L_hl")
    g.lab("L_red")
    g.stamp(5)
    e(f"s_mov_b32 s34, {a.spin}")
    if a.pend:
        def rload(n):
            so = "s30" if n < 4 else "s31"
            e(f"buffer_load_dwordx4 v[{16+4*n}:{19+4*n}], v7, s[56:59], {so} offen offset:{(n%4)*1024} {LD}")
        def rcheck(n):
            v = 16+4*n
            e(f"v_xor_b32 v9, v{v}, v12")
            for r in range(1, 4): e(f"v_bitop3_b32 v9, v9, v{v+r}, v12 bitop3:0xf6")
            e(f"v_and_b32 v9, {TAGM}, v9")
            e("v_cmp_ne_u32 vcc, 0, v9")
        for n in range(7): rload(n)
        e("s_mov_b32 s35, 0")
        for n in range(7):
            e(f"s_waitcnt vmcnt({6-n})")
            rcheck(n)
            e("s_cmp_lg_u64 vcc, 0")
            e(f"s_cselect_b32 s32, {1 << n}, 0")
            e("s_or_b32 s35, s35, s32")
        e("s_cbranch_scc0 L_rsum")
        g.lab("L_rl")
        if a.rretry: e(f"s_sleep {a.rretry}")
        for n in range(7):
            e(f"s_bitcmp1_b32 s35, {n}")
            e(f"s_cbranch_scc0 L_rs{n}")
            rload(n)
            g.lab(f"L_rs{n}")
        e("s_waitcnt vmcnt(0)")
        for n in range(7):
            e(f"s_bitcmp1_b32 s35, {n}")
            e(f"s_cbranch_scc0 L_rt{n}")
            rcheck(n)
            e(f"s_cbranch_vccnz L_rt{n}")
            e(f"s_bitset0_b32 s35, {n}")
            g.lab(f"L_rt{n}")
        e("s_cmp_eq_u32 s35, 0")
        e("s_cbranch_scc1 L_rsum")
        e("s_sub_u32 s34, s34, 1")
        e("s_cmp_lg_u32 s34, 0")
        e("s_cbranch_scc1 L_rl")
        g.lab("L_rsum")
        for h in (0, 2):
            e(f"v_pk_add_f32 v[{16+h}:{17+h}], v[{16+h}:{17+h}], v[{20+h}:{21+h}]")
            e(f"v_pk_add_f32 v[{24+h}:{25+h}], v[{24+h}:{25+h}], v[{28+h}:{29+h}]")
            e(f"v_pk_add_f32 v[{32+h}:{33+h}], v[{32+h}:{33+h}], v[{36+h}:{37+h}]")
        for h in (0, 2):
            e(f"v_pk_add_f32 v[{16+h}:{17+h}], v[{16+h}:{17+h}], v[{24+h}:{25+h}]")
            e(f"v_pk_add_f32 v[{32+h}:{33+h}], v[{32+h}:{33+h}], v[{40+h}:{41+h}]")
        for h in (0, 2):
            e(f"v_pk_add_f32 v[{16+h}:{17+h}], v[{16+h}:{17+h}], v[{32+h}:{33+h}]")
        e("s_nop 0")
    else:
        g.lab("L_rl")
        for n in range(7):
            so = "s30" if n < 4 else "s31"
            e(f"buffer_load_dwordx4 v[{16+4*n}:{19+4*n}], v7, s[56:59], {so} offen offset:{(n%4)*1024} {LD}")
        for n in range(7):
            e(f"s_waitcnt vmcnt({6-n})")
            for r in range(4):
                v = 16+4*n+r
                if n == 0 and r == 0: e(f"v_xor_b32 v9, v{v}, v12")
                else: e(f"v_bitop3_b32 v9, v9, v{v}, v12 bitop3:0xf6")
            if n:
                e(f"v_pk_add_f32 v[16:17], v[16:17], v[{16+4*n}:{17+4*n}]")
                e(f"v_pk_add_f32 v[18:19], v[18:19], v[{18+4*n}:{19+4*n}]")
        e(f"v_and_b32 v9, {TAGM}, v9")
        e("v_cmp_ne_u32 vcc, 0, v9")
        e("s_cbranch_vccz L_rok")
        e("s_sub_u32 s34, s34, 1")
        e("s_cmp_lg_u32 s34, 0")
        e("s_cbranch_scc1 L_rl")
    g.lab("L_rok")
    g.stamp(6)
    if a.diag: e(f"s_sub_u32 s84, {a.spin+1}, s34")
    e("s_nop 0")
    e("v_permlane32_swap_b32 v16, v17")
    e("v_permlane32_swap_b32 v18, v19")
    e("v_lshlrev_b32 v10, 16, v10")
    e("v_add_f32 v16, v16, v17")
    e("v_add_f32 v18, v18, v19")
    e("s_nop 1")
    e("v_permlane16_swap_b32 v16, v18")
    e("s_nop 0")
    e("v_add_f32 v16, v16, v18")
    e("s_nop 1")
    e("v_add_f32_dpp v16, v16, v16 row_ror:8 row_mask:0xf bank_mask:0xf")
    e("s_mov_b32 exec_lo, 0x00ff00ff")
    e("s_mov_b32 exec_hi, 0x00ff00ff")
    e("v_cvt_pk_bf16_f32 v16, v16, v16")
    e("v_and_b32 v16, 0xffff0000, v16")
    e("v_mul_f32 v16, v16, v11")
    e("v_cvt_pk_bf16_f32 v16, v16, v16")
    e("v_and_b32 v16, 0xffff0000, v16")
    e("v_fma_f32 v16, v10, 0, v16")
    e("v_add_f32 v16, v10, v16")
    e("v_cvt_pk_bf16_f32 v16, v16, v16")
    e(f"buffer_store_short v16, v8, s[48:51], s39 offen {a.ost2}")
    e(f"s_cmp_eq_u32 s2, {28*8 + SP}")
    e("s_cbranch_scc0 L_nobump")
    e("s_mov_b64 exec, 1")
    e(f"s_mov_b32 s30, {W_E}")
    e("buffer_store_dword v6, v1, s[56:59], s30 offen sc1")
    g.lab("L_nobump")
    g.stamp(7)
    if a.hold:
        e("s_cmp_eq_u32 s2, 1")
        e("s_cbranch_scc0 L_end")
        g.lab("L_hold")
        e("s_memrealtime s[68:69]")
        e("s_waitcnt lgkmcnt(0)")
        e("s_sub_u32 s68, s68, s86")
        e(f"s_cmp_lt_u32 s68, {a.hold}")
        e("s_cbranch_scc1 L_hold")
    if a.diag:
        g.lab("L_diag")
        e("s_waitcnt vmcnt(0) lgkmcnt(0)")
        g.stamp(10)
        e("s_mov_b64 exec, 1")
        e(f"s_add_u32 s56, s18, {W_DIAG}")
        e("s_addc_u32 s57, s19, 0")
        e("s_mov_b32 s58, 0x100000")
        e("s_mov_b32 s59, 0x20000")
        e("s_mul_i32 s30, s2, 5"); e("s_add_u32 s30, s30, s3"); e("s_lshl_b32 s30, s30, 6")
        e("v_mov_b32 v1, 0")
        e("s_mov_b32 s70, s86")
        for k in range(16):
            e(f"v_mov_b32 v2, s{70+k}")
            e(f"buffer_store_dword v2, v1, s[56:59], s30 offen offset:{4*k}")
    g.lab("L_end")
    e("s_endpgm")
    g.lab("L_code_end")

    hdr = open("standalone__moe_arch_mod__sampling.s.ref").read().split("; Override launch")[0] if not a.nohdr else ""
    src = hdr + f"; @launch grid=(256,1,1) block=(320,1,1) lds={a.lds or L_END}\n"
    ALIGN = ".p2align 8" if not a.align else ".p2align 12" + (f"\n.fill {(4096-768)//4}, 4, 0xbf810000\n.p2align 8" if a.align == 2 else "")
    src += f""".amdgcn_target "amdgcn-amd-amdhsa--gfx950"
.text
.globl {KN}
{ALIGN}
.type {KN},@function
{KN}:
""" + "\n".join(x for x in g.L if x) + f"""
.section .rodata,"a"
.p2align 6
.amdhsa_kernel {KN}
  .amdhsa_next_free_vgpr {a.vgpr}
  .amdhsa_next_free_sgpr 96
  .amdhsa_accum_offset {min(a.vgpr,256)}
  .amdhsa_group_segment_fixed_size 0
  .amdhsa_kernarg_size 64
  .amdhsa_user_sgpr_count 2
  .amdhsa_user_sgpr_kernarg_segment_ptr 1
  .amdhsa_system_sgpr_workgroup_id_x 1
  .amdhsa_float_denorm_mode_32 3
.end_amdhsa_kernel
"""
    src += f'; W_S={W_S + a.wsoff}\n'
    return src

def parse(argv):
    p = argparse.ArgumentParser()
    p.add_argument("-o", default="/dev/stdout")
    for k, v in dict(diag=0, depth=5, sdepth=0, spin=20000, wsoff=0, nohdr=1, hold=0, span=0, special=1, rbar=1, lds=0, vgpr=120,
                     tail=4, c1=4, gearly=0, rdelay=-1, agdelay=-1, freerun=1, pretouch=1, hintg=24, cmid=2, pend=1, cpace=8, npoll=1, psleep=0, gack=1, gsleep=0, gretry=0, rretry=0, ptp=0, cpre=5, npre=4, clate=1, pty=0, ipf=1, sonly=0, lin=0, late=0, align=0).items():
        p.add_argument("--" + k, type=int, default=v)
    for k, v in dict(nt="nt", st="sc1", ld="sc1", ost="", ost2="", xnt="nt", wrnt="", xsnt="", ptf="", ipff="").items():
        p.add_argument("--" + k, default=v)
    p.add_argument("--only", default="")
    a = p.parse_args(argv)
    for k in ("nt", "st", "ld", "ost", "ost2", "xnt", "wrnt", "xsnt", "ptf", "ipff"):
        setattr(a, k, getattr(a, k).replace("+", " ").replace("none", ""))
    a.only = [int(x) for x in a.only.split(",") if x]
    return a

if __name__ == "__main__":
    a = parse(sys.argv[1:])
    open(a.o, "w").write(gen(a))
```

```python
import sys, argparse

KN = "standalone__moe_arch_mod__sampling_kernel"
WB = 1024*3584*2
XBYTES = 8*32*1024*2

L_B = 0
L_C = 65536
L_X = 98304
XP = 1056
L_H = L_X + 8*XP
HP = 272
L_T = L_H + 8*HP
L_F = L_T + 4
L_END = L_T + 64

W_P = 0
YS = 28*128
W_P2 = 56*8*2048
W_Y = 2*W_P2
W_X = W_Y + 256*YS
W_R = W_X + 2048
W_M = W_R + 64*128
W_E = W_M + 256*128
W_S = W_E + 256
W_END = W_S + 1024
W_DIAG = 4 << 20

TAGM = 0x3ff

class G:
    def __init__(s, a):
        s.a = a; s.L = []; s.uid = 0
    def e(s, t): s.L.append("    " + t)
    def lab(s, t): s.L.append(t + ":")
    def u(s, p):
        s.uid += 1; return f"{p}_{s.uid}"
    def stamp(s, k, wait=True):
        if s.a.diag and (k == 0 or not s.a.only or k in s.a.only):
            if not wait:
                s.e("s_memrealtime s[86:87]"); return
            s.e("s_memrealtime s[68:69]")
            s.e("s_waitcnt lgkmcnt(0)")
            s.e(f"s_mov_b32 s{70+k}, s68")

def srd(e, r, lo, hi, n):
    e(f"s_mov_b32 s{r}, {lo}"); e(f"s_mov_b32 s{r+1}, {hi}"); e(f"s_mov_b32 s{r+2}, {n}"); e(f"s_mov_b32 s{r+3}, 0x20000")

def gen(a):
    g = G(a); e = g.e; D = a.depth
    NT = a.nt; ST = a.st; LD = a.ld
    SP = a.special
    PT = a.pretouch + (a.pty == 1)
    MB = 88
    CP = 60
    g.stamp(0, wait=False)
    if (a.hold or a.span) and not a.diag: e("s_memrealtime s[86:87]")
    e("s_load_dwordx16 s[4:19], s[0:1], 0")
    if a.ipf:
        e("s_getpc_b64 s[20:21]")
        g.lab("L_pf_base")
        e("v_lshlrev_b32 v7, 7, v0")
        e("v_cmp_gt_u32 vcc, L_code_end-L_pf_base, v7")
        e("s_and_saveexec_b64 s[22:23], vcc")
        e("s_cbranch_execz L_ipf2")
        if a.ipf < 32:
            e(f"s_cmp_ge_u32 s2, {8*a.ipf}")
            e("s_cbranch_scc1 L_ipf2")
        e(f"global_load_dword v119, v7, s[20:21] {a.ipff}")
        g.lab("L_ipf2")
        e("s_mov_b64 exec, s[22:23]")
    e("v_readfirstlane_b32 s3, v0")
    e("v_and_b32 v0, 63, v0")
    e("s_cmp_ge_u32 s2, 256")
    e("s_cbranch_scc1 L_end")
    if a.diag:
        for k in range(1, 16): e(f"s_mov_b32 s{70+k}, 0")
    e("s_and_b32 s20, s2, 7")
    e("s_lshr_b32 s21, s2, 3")
    e("s_lshr_b32 s3, s3, 6")
    e("s_cmp_eq_u32 s3, 4")
    e("s_cbranch_scc0 L_cmp")
    e("s_setprio 3")
    e(f"s_sub_u32 s26, s20, {a.rcls}")
    e("s_lshl_b32 s27, s26, 5")
    e("s_add_u32 s27, s27, s21")
    e("v_lshlrev_b32 v7, 4, v0")
    e("s_lshl_b32 s28, s27, 13")
    e("s_add_u32 s29, s28, 4096")
    e("v_mov_b32 v1, 0")
    e(f"v_mov_b32 v3, {L_T}")
    e("v_mov_b32 v2, 0")
    e("ds_write_b32 v3, v1 offset:4")
    e("ds_write2_b32 v3, v1, v2 offset0:2 offset1:3")
    e(f"s_mov_b32 s46, {XBYTES}")
    e("s_mov_b32 s47, 0x20000")
    e("s_movk_i32 s50, 2048")
    e("s_mov_b32 s51, s47")
    e(f"s_mov_b32 s58, {W_END}")
    e("s_mov_b32 s59, s47")
    e(f"s_mov_b32 s30, {W_E}")
    RSH = {128: 7, 64: 6, 32: 5, 16: 4, 8: 3}[a.rs]
    if a.rep:
        e(f"s_mov_b32 s36, {W_M}")
    else:
        e("s_lshl_b32 s36, s2, 7")
        e(f"s_add_u32 s36, s36, {W_M}")
    if a.pretouch:
        e(f"s_sub_u32 s37, s2, {28*8 + SP}")
        if not a.rep: e("s_and_b32 s37, s37, 0xffe7")
    e("s_cmp_lt_u32 s26, 2")
    e("s_waitcnt lgkmcnt(0)")
    if a.noctl:
        e("s_mov_b64 s[56:57], s[18:19]")
        op = a.inj
        e(f"s_mov_b64 exec, {0xff if op.startswith('st') else 1}")
        if op.startswith("ld"): e(f"buffer_load_dword v9, v1, s[56:59], s36 offen {op[2:]}")
        if op.startswith("st"): e(f"buffer_store_dwordx4 v[8:11], v7, s[56:59], s36 offen {op[2:]}")
        if op.startswith("sl"): e(f"s_load_dword s34, s[56:57], s36 {op[2:]}")
        if op == "at": e("s_atomic_swap s33, s[56:57], s36")
        e("s_barrier"); e("s_waitcnt vmcnt(0) lgkmcnt(0)"); e("s_endpgm")
    e("s_mov_b64 s[44:45], s[4:5]")
    e("s_cbranch_scc0 L_norl")
    e("s_mov_b64 s[48:49], s[6:7]")
    for n in range(8):
        e(f"buffer_load_dwordx4 v[{16+4*n}:{19+4*n}], v7, s[44:47], {'s28' if n < 4 else 's29'} offen offset:{(n%4)*1024} {a.xnt}")
        if n == 0:
            e(f"buffer_load_dwordx4 v[48:51], v7, s[48:51], 0 offen {a.wrnt}")
            e(f"buffer_load_dwordx4 v[52:55], v7, s[48:51], 0 offen offset:1024 {a.wrnt}")
    g.lab("L_norl")
    if a.wsoff:
        e(f"s_add_u32 s56, s18, {a.wsoff}")
        e("s_addc_u32 s57, s19, 0")
    else:
        e("s_mov_b64 s[56:57], s[18:19]")
    e("s_load_dword s33, s[56:57], s30")
    if a.mark:
        e("s_add_u32 s30, s30, 128")
        e("s_load_dword s35, s[56:57], s30")
    if a.pretouch:
        if not a.rep: e("s_load_dword s34, s[56:57], s36")
        e("s_cmp_eq_u32 s37, 0")
        e("s_cbranch_scc0 L_nopt")
        e(f"v_lshlrev_b32 v13, {RSH}, v0")
        e(f"s_mov_b32 s37, {W_R}")
        e(f"buffer_load_dword v2, v13, s[56:59], s37 offen {a.rpt}")
        if a.rep and a.pretouch == 1:
            e("v_lshlrev_b32 v13, 5, v0")
            e(f"v_cmp_gt_u32 vcc, {2*a.rep}, v0")
            e("s_and_saveexec_b64 s[42:43], vcc")
            e("buffer_load_dword v4, v13, s[56:59], s36 offen")
            e("s_mov_b64 exec, -1")
        g.lab("L_nopt")
    e("s_barrier")
    if a.sonly:
        if a.sonly > 2: e(f"s_sleep {a.sonly}")
        if a.sonly > 1: e("ds_write_b32 v3, v3 offset:4")
        e("s_branch L_diag")
    e("s_branch L_ctl")
    g.lab("L_cmp")
    if a.t0: e("s_memrealtime s[88:89]")
    def decode(t, t0, t1, t2):
        ty = {}
        for k, c in enumerate(a.qcls): ty[c] = k
        for k, c in enumerate(a.tcls): ty[c] = 4 + k
        ty[SP] = 8 + 3
        TY = sum(v << (4*c) for c, v in ty.items())
        e("s_lshl_b32 s22, s20, 2")
        e(f"s_lshr_b32 s22, {TY:#x}, s22")
        e(f"s_and_b32 s{t0}, s22, 3")
        e("s_mov_b64 s[24:25], 0")
        e("s_lshr_b32 s23, s21, 3")
        e(f"s_lshl2_add_u32 s{t2}, s{t0}, s23")
        e("s_and_b32 s23, s21, 7")
        e(f"s_and_b32 s{t1}, s22, 12")
        e(f"s_cbranch_scc0 L_dn{t}")
        e("s_bitcmp1_b32 s22, 2")
        e(f"s_cselect_b32 s{t1}, 24, 12")
        e(f"s_sub_u32 s23, s21, s{t1}")
        e(f"s_cbranch_scc1 L_ds{t}")
        e("s_lshr_b32 s25, s23, 4")
        e(f"s_lshr_b32 s{t2}, s23, 3")
        e(f"s_add_u32 s{t2}, s{t2}, s{t0}")
        e(f"s_add_u32 s{t2}, s{t2}, 16")
        e("s_and_b32 s23, s23, 7")
        g.lab(f"L_dn{t}")
        e(f"s_add_u32 s22, s{t2}, 2")
        e("s_mul_i32 s22, s22, 43")
        e("s_lshr_b32 s22, s22, 7")
        e(f"s_add_u32 s22, s22, s{t2}")
        e(f"s_branch L_dec{t}")
        g.lab(f"L_ds{t}")
        e("s_cmp_ge_u32 s21, 12")
        e(f"s_cselect_b32 s{t1}, 12, 0")
        e(f"s_addc_u32 s{t2}, s{t0}, s{t0}")
        e(f"s_sub_u32 s23, s21, s{t1}")
        e(f"s_lshl2_add_u32 s22, s{t2}, 1")
        e("s_mov_b32 s24, 1")
        g.lab(f"L_dec{t}")
        e("s_cmp_ge_u32 s23, 4")
        e(f"s_cselect_b32 s{t1}, 4, 0")
        e("s_cselect_b32 s24, s24, 0")
        e("s_addc_u32 s22, s22, s22")
        e(f"s_sub_u32 s23, s23, s{t1}")
        e("s_and_b32 s41, s23, s24")
    decode("c", 27, 28, 29)
    e("s_cmp_eq_u32 s25, 1")
    e("s_cbranch_scc1 L_end")
    e("v_lshrrev_b32 v5, 3, v0")
    e("v_lshrrev_b32 v2, 4, v0")
    e("v_lshl_add_u32 v1, v5, 1, v5") if False else None
    e("v_and_b32 v1, 3, v5")
    e("v_lshrrev_b32 v3, 5, v0")
    e("v_lshl_add_u32 v1, v3, 3, v1")
    e("v_lshlrev_b32 v3, 1, v2")
    e("v_xor_b32 v3, v3, v0")
    e("v_and_b32 v3, 7, v3")
    e("v_lshlrev_b32 v3, 4, v3")
    e("v_mul_u32_u24 v4, 7168, v1")
    e("v_add_u32 v4, v4, v3")
    if not a.cpage: e("v_lshl_add_u32 v5, v5, 11, v3")
    e("s_and_b32 s28, s3, 1")
    e("s_lshl_b32 s28, s28, 4")
    e("s_lshr_b32 s29, s3, 1")
    e("s_lshl_b32 s29, s29, 2")
    e("s_add_u32 s28, s28, s29")
    e("s_add_u32 s30, s24, 1")
    e("s_lshl_b32 s31, s24, 1")
    e("s_or_b32 s31, s31, 1")
    e("s_sub_u32 s32, 9, s24")
    e("s_lshr_b32 s33, s23, s30")
    e("s_and_b32 s34, s23, s31")
    e("s_lshl_b32 s35, s34, s32")
    e("s_add_u32 s36, s35, s28")
    e("s_mul_i32 s36, s36, 7168")
    e("s_lshl_b32 s37, s22, 7")
    e("s_add_u32 s36, s36, s37")
    ROT = a.rotn or a.rots
    def rot(r, t):
        e("s_cmp_eq_u32 s24, 1")
        e(f"s_cselect_b32 s{r}, {a.rots:#x}, s{r}")
        e(f"s_lshl_b32 s{t}, s23, 2")
        e(f"s_lshr_b32 s{r}, s{r}, s{t}")
        e(f"s_and_b32 s{r}, s{r}, 15")
    def wrap():
        if ROT:
            e("s_cmp_eq_u32 s36, s27")
            e("s_cselect_b32 s36, s26, s36")
    if ROT:
        e("s_mov_b32 s26, s36")
        e("s_lshl_b32 s27, 7168, s32")
        e("s_add_u32 s27, s27, s36")
        e(f"s_mov_b32 s37, {a.rotn:#x}")
        rot(37, 35)
        e(f"s_mul_i32 s37, s37, {32*7168}")
        e("s_add_u32 s36, s36, s37")
    if a.lin:
        e("v_lshlrev_b32 v4, 4, v0")
        e("v_mov_b32 v5, v4")
        e("s_lshl_b32 s36, s22, 17")
        e("s_add_u32 s37, s32, 7")
        e("s_lshl_b32 s37, s34, s37")
        e("s_add_u32 s36, s36, s37")
        e("s_lshl_b32 s37, s3, 10")
        e("s_add_u32 s36, s36, s37")
    e("s_lshl_b32 m0, s3, 10")
    e(f"s_mov_b32 s46, {WB}")
    e("s_mov_b32 s47, 0x20000")
    e("s_cmp_eq_u32 s33, 1")
    e("s_waitcnt lgkmcnt(0)")
    if a.t0: e("s_memrealtime s[90:91]")
    e("s_cselect_b32 s44, s10, s8")
    e("s_cselect_b32 s45, s11, s9")
    e(f"v_mov_b32 v13, {L_T}")
    DS = a.sdepth or max(2, (D+1)//2)
    e("s_cmp_eq_u32 s24, 1")
    D0 = max(a.d0, D); DS0 = max(a.sd0, DS)
    DF = min(a.df or 99, DS0, D0) if a.df else 0
    if DF: e(f"s_mov_b32 s43, {DF}")
    else: e(f"s_cselect_b32 s43, {DS0}, {D0}")
    e("s_barrier")
    if a.t0: e("s_memrealtime s[92:93]")
    g.lab("L_b0")
    e(f"buffer_load_dwordx4 v4, s[44:47], s36 offen {NT} lds")
    e(f"s_add_u32 s36, s36, {4096 if a.lin else 32*7168}")
    e("s_add_u32 m0, m0, 4096")
    wrap()
    e("s_sub_u32 s43, s43, 1")
    e("s_cmp_lg_u32 s43, 0")
    e("s_cbranch_scc1 L_b0")
    if a.t0:
        e("s_memrealtime s[94:95]")
        e("s_waitcnt lgkmcnt(0)")
        e("s_mov_b32 s74, s88"); e("s_mov_b32 s75, s90"); e("s_mov_b32 s76, s92"); e("s_mov_b32 s77, s94")
    e("s_cmp_eq_u32 s24, 1")
    e("s_cbranch_scc1 L_slow")

    def cload():
        e(f"buffer_load_dwordx4 v5, s[48:51], s39 offen {NT} lds")
        e(f"s_add_u32 m0, m0, {4096 if a.cpage else 1024}")
        e(f"s_add_u32 s39, s39, {4096 if a.cpage else 1024 if a.lin else 8*2048}")

    TR = [4, 6, 8, 10, 14, 16, 28, 30, 32, 34, 52, 54, 60, 62, 64, 66, 68, 70, 72, 74, 76, 78, 80, 82]
    def bphase(nb, d, tag, d0):
        n1 = nb - a.tail*nb//16
        half = nb//2
        def bload():
            e(f"buffer_load_dwordx4 v4, s[44:47], s36 offen {NT} lds")
            e("s_add_u32 m0, m0, 4096")
            e(f"s_add_u32 s36, s36, {4096 if a.lin else 32*7168}")
            wrap()
        srd(e, 48, "s12", "s13", WB)
        e("s_lshr_b32 s38, s23, s24")
        e("s_and_b32 s40, s22, 1")
        e("s_lshl2_add_u32 s40, s40, s38")
        e("s_lshr_b32 s38, s22, 1")
        e("s_lshr_b32 s39, s3, 1")
        e("s_lshl1_add_u32 s39, s38, s39")
        e("s_lshl_b32 s39, s39, 17")
        e("s_and_b32 s42, s3, 1")
        if a.cpage:
            e("s_lshl3_add_u32 s42, s42, s40")
            e("s_lshl_b32 s42, s42, 8")
            e("v_bfe_u32 v3, v0, 4, 1")
            e("s_and_b32 s43, s3, 1")
            e("s_lshl_b32 s43, s43, 1")
            e("v_or_b32 v3, s43, v3")
            e("v_lshlrev_b32 v3, 1, v3")
            e("v_xor_b32 v3, v3, v0")
            e("v_and_b32 v3, 7, v3")
            e("v_lshlrev_b32 v3, 4, v3")
            e("v_lshrrev_b32 v5, 5, v0")
            e("v_lshl_add_u32 v3, v5, 7, v3")
            e("v_bfe_u32 v5, v0, 3, 2")
            e("v_lshl_add_u32 v5, v5, 15, v3")
        else:
            e("s_lshl1_add_u32 s42, s40, s42")
            e("s_lshl_b32 s42, s42, 7")
        e("s_add_u32 s39, s39, s42")
        e(f"s_lshl_b32 s42, s3, {10 if a.cpage else 13}")
        e(f"s_add_u32 s42, s42, {L_C}")
        e("v_lshrrev_b32 v1, 5, v0")
        e("v_and_b32 v3, 31, v0")
        e("v_bfe_u32 v6, v0, 2, 3")
        e("v_lshlrev_b32 v7, 7, v6")
        e("v_lshl_add_u32 v7, v1, 10, v7")
        e("v_lshrrev_b32 v6, 1, v6")
        e("v_lshl_add_u32 v7, v6, 5, v7")
        e("v_and_b32 v6, 3, v0")
        e("v_lshl_add_u32 v7, v6, 3, v7")
        e("s_lshl_b32 s43, s3, 5")
        e("v_xor_b32 v6, s43, v7")
        if a.cpage:
            e("v_bfe_u32 v3, v0, 2, 2")
            e("v_lshlrev_b32 v7, 7, v3")
            e("v_lshl_add_u32 v7, v2, 10, v7")
            e("v_bfe_u32 v3, v0, 3, 2")
            e("v_lshl_add_u32 v7, v3, 5, v7")
            e("v_and_b32 v3, 3, v0")
            e("v_lshl_add_u32 v7, v3, 3, v7")
        e("s_and_b32 s43, s3, 1")
        e("s_lshl_b32 s43, s43, 6")
        e("v_xor_b32 v7, s43, v7")
        e("s_lshr_b32 s43, s3, 1")
        e(f"s_lshl_b32 s43, s43, {9 if a.cpage else 13}")
        e(f"s_add_u32 s43, s43, {L_C}")
        e("v_add_u32 v7, s43, v7")
        e("v_and_b32 v8, 7, v0")
        e("v_bfe_u32 v9, v0, 3, 1")
        e(f"v_mul_u32_u24 v10, {XP}, v8")
        e("v_lshl_add_u32 v10, v2, 4, v10")
        e(f"v_mul_u32_u24 v11, {half*64}, v9")
        e("v_add_u32 v10, v10, v11")
        if nb == 8:
            e("s_and_b32 s43, s34, 1")
            e("s_lshl_b32 s43, s43, 9")
            e(f"s_add_u32 s43, s43, {L_X}")
            e("v_add_u32 v10, s43, v10")
        else:
            e(f"v_add_u32 v10, {L_X}, v10")
        e("s_lshl_b32 s60, s22, 3")
        e("s_lshl_b32 s52, s33, 2")
        e("s_add_u32 s52, s52, s60")
        e("s_add_u32 s52, s52, s34")
        e("s_lshl_b32 s52, s52, 11")
        e("s_lshl_b32 s53, s3, 9")
        e("s_add_u32 s52, s52, s53")
        e(f"s_add_u32 s56, s18, {a.wsoff}")
        e("s_addc_u32 s57, s19, 0")
        e(f"s_mov_b32 s58, {W_END}")
        e("s_mov_b32 s59, 0x20000")
        e("v_lshlrev_b32 v14, 6, v8")
        e("v_lshl_add_u32 v14, v2, 4, v14")
        e(f"v_mov_b32 v15, {TAGM}")
        sk = g.u("L_noc")
        XF = 16; WF = 48
        def wread(k):
            e(f"ds_read_b64_tr_b16 v[{WF+4*k}:{WF+4*k+1}], v6 offset:{k*4096}")
            e(f"ds_read_b64_tr_b16 v[{WF+4*k+2}:{WF+4*k+3}], v6 offset:{k*4096+2048}")
        def mfma(k):
            acc = 112 if k < half else 116
            xf = XF + 4*(k % half)
            cin = "0" if k in (0, half) else f"v[{acc}:{acc+3}]"
            e(f"v_mfma_f32_16x16x32_bf16 v[{acc}:{acc+3}], v[{WF+4*k}:{WF+4*k+3}], v[{xf}:{xf+3}], {cin}")
        if DF:
            for _ in range(d0 - DF): bload()
        if a.touch:
            e("s_bitcmp1_b32 s3, 0")
            e(f"s_cbranch_scc1 T_pub{tag}")
            e(f"s_branch T_gat{tag}")
            g.lab(f"T_back{tag}")
        if a.trace:
            tot = nb + 8
            for n in range(tot):
                issued = min(tot, n + d0)
                e(f"s_waitcnt vmcnt({issued - n - 1})")
                e(f"s_memrealtime s[{48+2*n if n >= 8 else 4+2*n}:{49+2*n if n >= 8 else 5+2*n}]") if False else None
                r = TR[n]
                e(f"s_memrealtime s[{r}:{r+1}]")
                if issued < tot:
                    if issued == nb: e("s_mov_b32 m0, s42"); e("s_nop 0")
                    (bload if issued < nb else cload)()
            e("s_waitcnt lgkmcnt(0)")
            e(f"s_add_u32 s56, s18, {W_DIAG + (1 << 20)}")
            e("s_addc_u32 s57, s19, 0")
            e("s_mov_b32 s58, 0x100000")
            e("s_lshl_b32 s40, s2, 2"); e("s_add_u32 s40, s40, s3"); e("s_lshl_b32 s40, s40, 7")
            e("v_mov_b32 v1, 0"); e("s_mov_b64 exec, 1")
            e("v_mov_b32 v2, s86"); e("buffer_store_dword v2, v1, s[56:59], s40 offen offset:124")
            e("v_mov_b32 v2, s22"); e("buffer_store_dword v2, v1, s[56:59], s40 offen offset:120")
            e("v_mov_b32 v2, s23"); e("buffer_store_dword v2, v1, s[56:59], s40 offen offset:116")
            e(f"v_mov_b32 v2, {tot}"); e("buffer_store_dword v2, v1, s[56:59], s40 offen offset:112")
            for n in range(tot):
                e(f"v_mov_b32 v2, s{TR[n]}"); e(f"buffer_store_dword v2, v1, s[56:59], s40 offen offset:{4*n}")
            e("s_endpgm")
        if a.diag and a.t0:
            e(f"s_waitcnt vmcnt({d0-1})")
            g.stamp(12)
        if a.late:
            e(f"s_mov_b32 s35, {nb - d0}")
            e(f"s_bitcmp1_b32 {a.late}, s20")
            e(f"s_cbranch_scc1 L_bg{tag}")
        npre = min(a.npre * nb // 16, nb - d0 - 1)
        if npre > 0:
            e(f"s_mov_b32 s35, {npre}")
            g.lab(f"L_bp{tag}")
            e(f"s_waitcnt vmcnt({d-1})")
            bload()
            e("s_sub_u32 s35, s35, 1")
            e("s_cmp_lg_u32 s35, 0")
            e(f"s_cbranch_scc1 L_bp{tag}")
        g.stamp(13)
        e(f"s_mov_b32 s35, {nb - d0 - max(npre, 0)}")
        e(f"s_mov_b32 s37, {a.spin*8}")
        e("s_mov_b32 s34, -1")
        def check(back, out):
            e("s_waitcnt lgkmcnt(0)")
            e("v_readfirstlane_b32 s43, v12")
            e("s_sub_u32 s37, s37, 1")
            e(f"s_cbranch_scc1 {out}")
            e("s_cmp_eq_u32 s43, 0")
            e(f"s_cbranch_scc1 {back}")
        g.lab(f"L_bl{tag}")
        e("ds_read_b32 v12, v13 offset:4")
        e(f"s_waitcnt vmcnt({d-1})")
        bload()
        e("s_sub_u32 s35, s35, 1")
        e("s_cmp_eq_u32 s35, 0")
        e(f"s_cbranch_scc1 L_cl0{tag}")
        check(f"L_bl{tag}", f"L_bg{tag}")
        g.lab(f"L_bg{tag}")
        e(f"s_cmp_gt_u32 s35, {a.latet * nb // 16}")
        e("s_cselect_b32 s34, 0, -1")
        g.lab(f"L_bh{tag}")
        bload()
        e("s_sub_u32 s35, s35, 1")
        e("s_cmp_lg_u32 s35, 0")
        e(f"s_cbranch_scc1 L_bh{tag}")
        g.lab(f"L_cl0{tag}")
        e("s_mov_b32 m0, s42")
        ncp = a.cpre if nb == 16 else a.scpre
        def csync(k):
            lab = g.u("L_cs")
            e("s_mov_b64 exec, 1")
            e(f"ds_add_rtn_u32 v12, v13, v11 offset:{8+4*k}")
            e("s_mov_b64 exec, -1")
            e("s_waitcnt lgkmcnt(0)")
            e("v_readfirstlane_b32 s43, v12")
            e("s_cmp_ge_u32 s43, 3")
            e(f"s_cbranch_scc1 {lab}x")
            g.lab(lab)
            e(f"ds_read_b32 v12, v13 offset:{8+4*k}")
            e("s_waitcnt lgkmcnt(0)")
            e("v_readfirstlane_b32 s43, v12")
            e("s_cmp_lt_u32 s43, 4")
            e(f"s_cbranch_scc1 {lab}")
            g.lab(f"{lab}x")
        e("v_mov_b32 v11, 1")
        def noc(x):
            if nb == 8:
                e("s_cmp_eq_u32 s41, 1"); e(f"s_cbranch_scc1 {sk}{x}")
        e("s_mov_b32 s35, 8")
        KP = a.kp
        def burst():
            lab = g.u("L_bu")
            g.lab(lab)
            cload()
            e("s_sub_u32 s35, s35, 1")
            e(f"s_cmp_gt_u32 s35, {KP}")
            e(f"s_cbranch_scc1 {lab}")
        def steps(j0, j1, wait_paced, wait_burst):
            lab = g.u("L_st")
            e(f"s_cmp_eq_u32 s35, {KP}")
            e(f"s_cbranch_scc1 {lab}b")
            for j in range(j0, j1):
                e("ds_read_b32 v12, v13 offset:4")
                e(f"s_waitcnt vmcnt({max(d-1, j)}) lgkmcnt(0)")
                e("v_readfirstlane_b32 s43, v12")
                e("s_and_b32 s43, s43, s34")
                e(f"s_cbranch_scc1 {lab}a")
                cload()
                e("s_sub_u32 s35, s35, 1")
            e(f"s_waitcnt vmcnt({wait_paced})")
            e(f"s_branch {lab}c")
            g.lab(f"{lab}a")
            burst()
            g.lab(f"{lab}b")
            e(f"s_waitcnt vmcnt({wait_burst})")
            g.lab(f"{lab}c")
        assert ncp < 8 - KP
        early = max(0, min(ncp, d - (nb - n1)))
        if n1 < nb:
            noc("f")
            steps(0, early, nb - n1 + early, nb - n1 + 8 - KP)
            if nb == 8:
                e(f"s_branch {sk}g")
                g.lab(f"{sk}f")
                e(f"s_waitcnt vmcnt({nb - n1})")
                g.lab(f"{sk}g")
            g.stamp(1)
            csync(0)
            for k in range(n1): wread(k)
        else:
            early = 0
        noc("d")
        steps(early, ncp, ncp, 8 - KP)
        if nb == 8:
            e(f"s_branch {sk}e")
            g.lab(f"{sk}d")
            e("s_waitcnt vmcnt(0)")
            g.lab(f"{sk}e")
        g.stamp(2)
        csync(1)
        g.stamp(3)
        for k in range(n1 if n1 < nb else 0, nb): wread(k)
        noc("h")
        e(f"s_cmp_eq_u32 s35, {KP}")
        e(f"s_cbranch_scc1 {sk}h")
        e("s_cmp_eq_u32 s34, 0")
        e(f"s_cbranch_scc1 {sk}h")
        g.lab(f"L_cx{tag}")
        e("ds_read_b32 v12, v13 offset:4")
        e(f"s_waitcnt vmcnt({d-1}) lgkmcnt(0)")
        e("v_readfirstlane_b32 s43, v12")
        e("s_cmp_lg_u32 s43, 0")
        e(f"s_cbranch_scc1 {sk}i")
        if a.keep:
            e("s_sub_u32 s37, s37, 1")
            e(f"s_cbranch_scc1 {sk}i")
            e(f"s_cmp_le_u32 s35, {a.keep}")
            e(f"s_cbranch_scc1 L_cx{tag}")
        cload()
        e("s_sub_u32 s35, s35, 1")
        e(f"s_cmp_gt_u32 s35, {KP}")
        e(f"s_cbranch_scc1 L_cx{tag}")
        e(f"s_branch {sk}h")
        g.lab(f"{sk}i")
        burst()
        g.lab(f"{sk}h")
        if a.sonly:
            e("s_cmp_eq_u32 s41, 1"); e("s_cbranch_scc1 L_diag")
            e("s_cmp_eq_u32 s35, 0"); e("s_cbranch_scc1 L_diag")
            g.lab(f"L_so{tag}")
            cload()
            e("s_sub_u32 s35, s35, 1"); e("s_cmp_lg_u32 s35, 0"); e(f"s_cbranch_scc1 L_so{tag}")
            e("s_branch L_diag")
        e("s_waitcnt lgkmcnt(0)")
        g.stamp(4)
        e("s_barrier")
        g.stamp(5)
        for f in range(half):
            e(f"ds_read_b128 v[{XF+4*f}:{XF+4*f+3}], v10 offset:{f*64}")
        e("ds_read_b32 v12, v13")
        e("ds_read_b32 v11, v13 offset:16")
        for f in range(half):
            e(f"s_waitcnt lgkmcnt({half + 1 - f})")
            mfma(f); mfma(f + half)
        e("s_waitcnt lgkmcnt(0)")

    bphase(16, D, "n", D0)
    e("s_branch L_pub")
    g.lab("L_slow")
    bphase(8, DS, "s", DS0)
    if a.touch:
        e("s_branch L_pub")
        g.lab("T_pubn"); e("s_branch T_backn")
        g.lab("T_pubs"); e("s_branch T_backs")
    g.lab("L_pub")
    e("s_and_b32 s53, s3, 1")
    e("s_lshl1_add_u32 s60, s38, s53")
    e("s_lshl_b32 s62, s60, 14")
    e("s_lshr_b32 s53, s3, 1")
    e("s_lshl_b32 s53, s53, 8")
    e("s_add_u32 s62, s62, s53")
    e("s_add_u32 s63, s62, 8192")
    e("s_add_u32 s54, s62, 4096")
    e("s_add_u32 s55, s63, 4096")
    for r in range(4):
        e(f"v_add_f32_dpp v{112+r}, v{116+r}, v{112+r} row_ror:8 row_mask:0xf bank_mask:0xf")
    e("s_mov_b32 exec_lo, 0x00ff00ff")
    e("s_mov_b32 exec_hi, 0x00ff00ff")
    for r in range(4):
        e(f"v_bfi_b32 v{112+r}, v15, v12, v{112+r}")
    e("v_readfirstlane_b32 s33, v11")
    e(f"buffer_store_dwordx4 v[112:115], v14, s[56:59], s52 offen {a.pst}")
    if a.clean:
        e("s_mov_b32 s31, s52")
        e("v_mov_b32 v36, v14")
    e("s_cmp_eq_u32 s33, 1")
    e(f"s_cselect_b32 s32, 0, {W_P2}")
    e("s_cbranch_scc1 L_pub1")
    e("s_add_u32 s52, s52, s32")
    e(f"buffer_store_dwordx4 v[112:115], v14, s[56:59], s52 offen {ST}")
    g.lab("L_pub1")
    e("s_mov_b64 exec, -1")
    g.stamp(6)
    e("s_cmp_eq_u32 s41, 1")
    e(f"s_cbranch_scc1 {'L_ydone' if a.clean else 'L_cdone'}")
    e("s_mov_b32 s37, s35")
    e("s_cmp_eq_u32 s35, 0")
    e("s_cbranch_scc1 L_clx")
    g.lab("L_cll")
    cload()
    e("s_sub_u32 s35, s35, 1")
    e("s_cmp_lg_u32 s35, 0")
    e("s_cbranch_scc1 L_cll")
    g.lab("L_clx")
    e("v_bfe_u32 v18, v0, 2, 2")
    e("v_and_b32 v3, 3, v0")
    e("v_lshlrev_b32 v14, 9, v2")
    e("v_lshl_add_u32 v14, v18, 6, v14")
    e("v_lshl_add_u32 v14, v3, 4, v14")
    e(f"v_mul_u32_u24 v16, {HP}, v8")
    e("v_lshl_add_u32 v16, v2, 4, v16")
    e(f"v_add_u32 v16, {L_H}, v16")
    e(f"v_mul_u32_u24 v17, {HP}, v18")
    if a.cpage:
        e("v_lshl_add_u32 v17, v3, 6, v17")
        e("v_lshl_add_u32 v17, v2, 1, v17")
    else:
        e("v_lshl_add_u32 v17, v3, 4, v17")
        e("v_lshl_add_u32 v17, v1, 6, v17")
        e("v_bfe_u32 v18, v0, 4, 1")
        e("v_lshl_add_u32 v17, v18, 3, v17")
    e("s_lshr_b32 s52, s3, 1")
    e(f"s_mul_i32 s52, s52, {4*HP}")
    e("s_and_b32 s53, s3, 1")
    e(f"s_lshl_b32 s53, s53, {5 if a.cpage else 7}")
    e("s_add_u32 s52, s52, s53")
    e(f"s_add_u32 s52, s52, {L_H}")
    e("v_add_u32 v17, s52, v17")
    e("v_xor_b32 v37, 32, v7")
    e(f"v_mul_u32_u24 v19, {4*YS}, v8")
    e("v_lshl_add_u32 v19, v9, 6, v19")
    e("v_lshl_add_u32 v19, v2, 4, v19")
    e("s_lshl2_add_u32 s52, s40, s3")
    e("s_and_b32 s53, s52, 7")
    e("s_cmp_eq_u32 s53, s20")
    e("s_cselect_b32 s33, s33, 0")
    e("s_lshr_b32 s52, s52, 3")
    e("s_lshl_b32 s53, s53, 5")
    e("s_add_u32 s52, s52, s53")
    e(f"s_mul_i32 s52, s52, {YS}")
    e("s_lshl_b32 s53, s38, 7")
    e("s_add_u32 s52, s52, s53")
    e(f"s_add_u32 s52, s52, {W_Y}")
    e(f"s_mov_b32 s61, {a.spin}")
    GA = [20, 24, 28, 32, 88, 92, 96, 100]
    def gloads(slow):
        for k, (so, off) in enumerate((("s62", 0), ("s62", 2048), ("s63", 0), ("s63", 2048), ("s54", 0), ("s54", 2048), ("s55", 0), ("s55", 2048))[:8 if slow else 4]):
            e(f"buffer_load_dwordx4 v[{GA[k]}:{GA[k]+3}], v14, s[56:59], {so} offen offset:{off} {LD}")
    def creads():
        for ks in range(4):
            for tt in range(2):
                r = 48 + 8*ks + 4*tt
                av = 7 if tt == 0 else 37
                off = ks*8192 if a.cpage else (ks >> 1)*16384 + (ks & 1)*4096
                e(f"ds_read_b64_tr_b16 v[{r}:{r+1}], v{av} offset:{off}")
                e(f"ds_read_b64_tr_b16 v[{r+2}:{r+3}], v{av} offset:{off+(4096 if a.cpage else 2048)}")
    def gather(slow):
        t = "s" if slow else "n"
        n = 8 if slow else 4
        if a.gk:
            e(f"s_waitcnt vmcnt({a.gk})")
            e(f"s_cmp_ge_u32 s37, {a.gk}")
            e(f"s_cbranch_scc1 L_gw{t}")
        e(f"s_waitcnt vmcnt({a.gnow})")
        g.lab(f"L_gw{t}")
        if a.gsleep: e(f"s_sleep {a.gsleep}")
        g.stamp(7)
        gloads(slow)
        if a.gnow:
            e("s_cmp_eq_u32 s37, 0")
            e(f"s_cbranch_scc0 L_gx{t}")
            e(f"s_waitcnt vmcnt({n+1})")
            e(f"s_branch L_gy{t}")
            g.lab(f"L_gx{t}")
        e(f"s_waitcnt vmcnt({n})")
        g.lab(f"L_gy{t}")
        g.stamp(11)
        e("s_barrier")
        creads()
        e(f"s_branch L_gc{t}")
        g.lab(f"L_g{t}")
        if a.gretry: e(f"s_sleep {a.gretry}")
        for r in (62, 63, 54, 55): e(f"s_add_u32 s{r}, s{r}, s32")
        e("s_sub_u32 s32, 0, s32")
        gloads(slow)
        g.lab(f"L_gc{t}")
        first = True
        for k in range(n):
            e(f"s_waitcnt vmcnt({n-1-k})")
            for r in range(4):
                if first: e(f"v_xor_b32 v18, v{GA[k]+r}, v12")
                else: e(f"v_bitop3_b32 v18, v18, v{GA[k]+r}, v12 bitop3:0xf6")
                first = False
        e("v_and_b32 v18, v15, v18")
        e("v_cmp_ne_u32 vcc, 0, v18")
        e(f"s_cbranch_vccz L_gok{t}")
        e("s_sub_u32 s61, s61, 1")
        e("s_cmp_lg_u32 s61, 0")
        e(f"s_cbranch_scc1 L_g{t}")
        g.lab(f"L_gok{t}")
        if slow:
            for k in range(4):
                for h in (0, 2):
                    e(f"v_pk_add_f32 v[{GA[k]+h}:{GA[k]+h+1}], v[{GA[k]+h}:{GA[k]+h+1}], v[{GA[k+4]+h}:{GA[k+4]+h+1}]")
    e("s_and_b32 s60, s60, 7")
    e("s_cmp_eq_u32 s60, 3")
    e("s_cbranch_scc0 L_gnorm")
    gather(True)
    e("s_branch L_act")
    if a.touch:
        g.lab("T_gatn"); e("s_branch T_backn")
        g.lab("T_gats"); e("s_branch T_backs")
    g.lab("L_gnorm")
    gather(False)
    g.lab("L_act")
    g.stamp(8)
    if a.diag: e(f"s_sub_u32 s84, {a.spin+1}, s61")
    e("v_pk_add_f32 v[20:21], v[20:21], v[24:25]")
    e("v_pk_add_f32 v[22:23], v[22:23], v[26:27]")
    e("v_pk_add_f32 v[28:29], v[28:29], v[32:33]")
    e("v_pk_add_f32 v[30:31], v[30:31], v[34:35]")
    e("v_cvt_pk_bf16_f32 v24, v20, v21")
    e("v_cvt_pk_bf16_f32 v25, v22, v23")
    e("v_cvt_pk_bf16_f32 v26, v28, v29")
    e("v_cvt_pk_bf16_f32 v27, v30, v31")
    e("v_lshlrev_b32 v20, 16, v24")
    e("v_and_b32 v21, 0xffff0000, v24")
    e("v_lshlrev_b32 v22, 16, v25")
    e("v_and_b32 v23, 0xffff0000, v25")
    for r in range(4): e(f"v_mul_f32 v{32+r}, 0xbfb8aa3b, v{20+r}")
    for r in range(4): e(f"v_exp_f32 v{32+r}, v{32+r}")
    e("v_lshlrev_b32 v28, 16, v26")
    e("v_and_b32 v29, 0xffff0000, v26")
    for r in range(4): e(f"v_add_f32 v{32+r}, 1.0, v{32+r}")
    for r in range(4): e(f"v_rcp_f32 v{32+r}, v{32+r}")
    e("v_lshlrev_b32 v30, 16, v27")
    e("v_and_b32 v31, 0xffff0000, v27")
    e("v_pk_mul_f32 v[20:21], v[20:21], v[32:33]")
    e("v_pk_mul_f32 v[22:23], v[22:23], v[34:35]")
    e("v_cvt_pk_bf16_f32 v24, v20, v21")
    e("v_cvt_pk_bf16_f32 v25, v22, v23")
    e("v_lshlrev_b32 v20, 16, v24")
    e("v_and_b32 v21, 0xffff0000, v24")
    e("v_lshlrev_b32 v22, 16, v25")
    e("v_and_b32 v23, 0xffff0000, v25")
    e("v_pk_mul_f32 v[20:21], v[20:21], v[28:29]")
    e("v_pk_mul_f32 v[22:23], v[22:23], v[30:31]")
    e("v_cvt_pk_bf16_f32 v24, v20, v21")
    e("v_cvt_pk_bf16_f32 v25, v22, v23")
    if a.cpage:
        e("ds_write_b16 v17, v24")
        e("ds_write_b16_d16_hi v17, v24 offset:16")
        e("ds_write_b16 v17, v25 offset:8")
        e("ds_write_b16_d16_hi v17, v25 offset:24")
    else:
        e("ds_write_b64 v17, v[24:25]")
    e("v_cmp_eq_u32 vcc, 1, v9")
    e("s_waitcnt lgkmcnt(0)")
    e("s_barrier")
    for ks in range(4): e(f"ds_read_b128 v[{20+4*ks}:{23+4*ks}], v16 offset:{64*ks}")
    for ks in range(4):
        e(f"s_waitcnt lgkmcnt({3-ks})")
        for tt in range(2):
            cin = "0" if ks == 0 else f"v[{80+4*tt}:{83+4*tt}]"
            e(f"v_mfma_f32_16x16x32_bf16 v[{80+4*tt}:{83+4*tt}], v[{48+8*ks+4*tt}:{51+8*ks+4*tt}], v[{20+4*ks}:{23+4*ks}], {cin}")
    e("s_cmp_eq_u32 s33, 1")
    e("s_nop 6")
    for r in range(4):
        e(f"v_cndmask_b32 v{80+r}, v{80+r}, v{84+r}, vcc")
    for r in range(4):
        e(f"v_bfi_b32 v{80+r}, v15, v12, v{80+r}")
    e("s_cbranch_scc1 L_yloc")
    e(f"buffer_store_dwordx4 v[80:83], v19, s[56:59], s52 offen {ST}")
    e("s_branch L_ydone")
    g.lab("L_yloc")
    e(f"buffer_store_dwordx4 v[80:83], v19, s[56:59], s52 offen {a.yst}")
    g.lab("L_ydone")
    g.stamp(9)
    e("s_barrier")
    if a.clean:
        if a.clean == 1: e("s_waitcnt vmcnt(0)")
        e("s_mov_b32 exec_lo, 0x00ff00ff")
        e("s_mov_b32 exec_hi, 0x00ff00ff")
        e(f"buffer_store_dwordx4 v[112:115], v36, s[56:59], s31 offen {ST}")
    g.lab("L_cdone")
    if a.diag:
        e("s_branch L_diag")
    e("s_endpgm")

    g.lab("L_ctl")
    g.stamp(1)
    decode("k", 37, 38, 39)
    e("s_add_u32 s52, s56, s36")
    e("s_addc_u32 s53, s57, 0")
    e("s_lshr_b32 s37, s23, s24")
    e("s_and_b32 s37, s37, 1")
    e("s_lshl_b32 s37, s37, 10")
    if ROT:
        e(f"s_mov_b32 s38, {a.rotn:#x}")
        rot(38, 39)
        e("s_lshl_b32 s38, s38, 6")
        e("s_lshr_b32 s39, 1023, s24")
        e("v_add_u32 v84, s38, v7")
        e("v_bfi_b32 v84, s39, v84, v7")
        e("v_add_u32 v84, s37, v84")
    else:
        e("v_add_u32 v84, s37, v7")
    for b in range(1, 8):
        e(f"v_add_u32 v{84+b}, {b*65536}, v84")
    e("s_waitcnt lgkmcnt(0)")
    e("s_add_u32 s33, s33, 1")
    e("v_mov_b32 v6, s33")
    if a.mark:
        e("s_cmp_eq_u32 s35, s33")
        e("s_cbranch_scc0 L_ontime")
        e("ds_write_b32 v3, v3 offset:4")
        if a.diag: e("s_mov_b32 s82, 1")
        g.lab("L_ontime")
        e(f"s_sub_u32 s35, s2, {a.rcls}")
        e("s_cmp_lt_u32 s35, 2")
        e("s_cbranch_scc0 L_nomark")
        e("s_mov_b32 s10, s33")
        e("s_atomic_swap s10, s[56:57], s30")
        g.lab("L_nomark")
    e("s_cmp_lt_u32 s26, 2")
    e("s_cbranch_scc1 L_route")
    e("s_branch L_rdone")
    g.lab("L_route")
    e("s_and_b32 s30, s27, 7")
    e("s_lshl_b32 s30, s30, 13")
    e(f"s_sub_u32 s30, {31 << 11}, s30")
    e(f"s_lshl_b32 s31, s27, {RSH}")
    e(f"s_add_u32 s31, s31, {W_R}")
    for tk in range(4):
        for hlf in range(2):
            n = 2*tk + hlf
            e(f"s_waitcnt vmcnt({7 - n + (1 if n == 0 else 0)})")
            for r in range(4):
                src = "0" if (hlf == 0 and r == 0) else f"v{8+tk}"
                e(f"v_dot2_f32_bf16 v{8+tk}, v{16+4*n+r}, v{48+4*hlf+r}, {src}")
    g.stamp(12)
    e("s_nop 1")
    e("s_nop 0")
    e("v_permlane32_swap_b32 v8, v9")
    e("v_permlane32_swap_b32 v10, v11")
    e("v_bfe_u32 v13, v0, 4, 1")
    e("v_add_f32 v8, v8, v9")
    e("v_add_f32 v10, v10, v11")
    e("v_lshrrev_b32 v14, 5, v0")
    e("v_lshl_add_u32 v13, v13, 1, v14")
    e("v_permlane16_swap_b32 v8, v10")
    e("v_lshlrev_b32 v13, 11, v13")
    e("v_add_f32 v8, v8, v10")
    e("v_sub_u32 v12, s30, v13")
    for sh in (8, 4, 2, 1):
        e("s_nop 0" if sh == 8 else "s_nop 1")
        e(f"v_add_f32_dpp v8, v8, v8 row_ror:{sh} row_mask:0xf bank_mask:0xf")
    e("s_movk_i32 s32, 0x7ff")
    e("v_cvt_pk_bf16_f32 v9, v8, v8")
    e("v_cmp_u_f32 vcc, v8, v8")
    e("v_and_or_b32 v12, v6, s32, v12")
    e("v_ashrrev_i32 v10, 31, v9")
    e("v_or_b32 v10, 0x80000000, v10")
    e("v_xor_b32 v9, v9, v10")
    e("v_cndmask_b32 v9, v9, 0, vcc")
    e("v_and_b32 v9, 0xffff0000, v9")
    e("v_or_b32 v8, v9, v12")
    e("v_or_b32 v9, v9, v12")
    e("s_nop 1")
    e("v_permlane32_swap_b32 v8, v9")
    e("s_nop 0")
    e("v_max_u32 v8, v8, v9")
    e("v_max_u32 v9, v8, v9")
    e("s_nop 1")
    e("v_permlane16_swap_b32 v8, v9")
    if a.ratom:
        e("v_max_u32 v10, v8, v9")
        e("s_mov_b32 s9, s33")
        e("v_readfirstlane_b32 s8, v10")
        e("s_atomic_swap_x2 s[8:9], s[56:57], s31")
    else:
        e("v_mov_b32 v11, v6")
        e("v_max_u32 v10, v8, v9")
        e("s_mov_b64 exec, 1")
        e(f"buffer_store_dwordx2 v[10:11], v1, s[56:59], s31 offen {ST}")
        e("s_mov_b64 exec, -1")
    g.stamp(2)
    if a.diag and a.rack:
        e("s_waitcnt vmcnt(0) lgkmcnt(0)")
        g.stamp(9)
    g.lab("L_rdone")
    if a.rep: e(f"s_cmp_eq_u32 s2, {28*8 + SP}")
    else: e("s_cmp_eq_u32 s25, 1")
    e("s_cbranch_scc0 L_poll")
    e(f"v_lshlrev_b32 v13, {RSH}, v0")
    e(f"s_mov_b32 s30, {W_R}")
    e("v_and_b32 v14, 1, v0")
    e("v_lshlrev_b32 v92, 7, v14")
    for r in range(1, 4):
        e(f"v_add_u32 v{92+r}, {32*r}, v92")
    e("v_lshrrev_b32 v15, 1, v0")
    e(f"v_lshlrev_b32 v15, {6 if a.rep else 7}, v15")
    e("v_lshl_add_u32 v15, v14, 4, v15")
    e("s_sub_u32 s31, s21, 28")
    e("s_lshl_b32 s31, s31, 13")
    e(f"s_add_u32 s31, s31, {W_M}")
    e("s_add_u32 s32, s31, 4096")
    e(f"s_mov_b32 s34, {a.spin}")
    if a.agdelay < 0: e("s_waitcnt vmcnt(0) lgkmcnt(0)")
    elif a.agdelay: e(f"s_sleep {a.agdelay}")
    NP = a.npoll
    for k in range(NP-1):
        e(f"buffer_load_dwordx2 v[{100+2*k}:{101+2*k}], v13, s[56:59], s30 offen {LD}")
        if a.psleep: e(f"s_sleep {a.psleep}")
    g.lab("L_ag")
    for k in range(NP):
        kk = (k+NP-1) % NP
        e(f"buffer_load_dwordx2 v[{100+2*kk}:{101+2*kk}], v13, s[56:59], s30 offen {LD}")
        e(f"s_waitcnt vmcnt({NP-1})")
        e(f"v_cmp_ne_u32 vcc, v{101+2*k}, v6")
        e(f"v_mov_b32 v8, v{100+2*k}")
        e("s_cbranch_vccz L_agok")
        if a.psleep and NP > 1: e(f"s_sleep {a.psleep}")
    e("s_sub_u32 s34, s34, 1")
    e("s_cmp_lg_u32 s34, 0")
    e("s_cbranch_scc1 L_ag")
    g.lab("L_agok")
    g.stamp(11)
    if a.diag: e(f"s_sub_u32 s85, {a.spin+1}, s34")
    e("s_nop 0")
    e("v_max_u32_dpp v8, v8, v8 quad_perm:[1,0,3,2] row_mask:0xf bank_mask:0xf")
    e("s_nop 1")
    e("v_max_u32_dpp v8, v8, v8 quad_perm:[2,3,0,1] row_mask:0xf bank_mask:0xf")
    e("s_nop 1")
    e("v_max_u32_dpp v8, v8, v8 row_half_mirror row_mask:0xf bank_mask:0xf")
    e("v_xor_b32 v8, 0xf800, v8")
    for r in range(4):
        e(f"ds_bpermute_b32 v{96+r}, v{92+r}, v8")
    e("s_waitcnt lgkmcnt(0)")
    if a.rep:
        e(f"s_bfm_b64 exec, {2*a.rep}, 0" if a.rep < 32 else "s_nop 0")
        e(f"buffer_store_dwordx4 v[96:99], v15, s[56:59], s36 offen {ST}")
        e("s_mov_b64 exec, -1")
    else:
        e(f"buffer_store_dwordx4 v[96:99], v15, s[56:59], s31 offen {ST}")
        e(f"buffer_store_dwordx4 v[96:99], v15, s[56:59], s32 offen {ST}")
    g.stamp(8)
    g.lab("L_poll")
    if True:
        e("s_getreg_b32 s35, hwreg(HW_REG_XCC_ID, 0, 4)")
        if a.diag:
            e("s_getreg_b32 s83, hwreg(HW_REG_XCC_ID)")
            e("s_add_u32 s83, s83, 0x1000000")
        e("s_lshl_b32 s54, s20, 8")
        e(f"s_add_u32 s54, s54, {W_X}")
        e("s_lshl_b32 s55, s21, 3")
        e("s_add_u32 s55, s55, s54")
        if a.tloc:
            e("v_lshlrev_b32 v4, 7, v0")
            e("s_mov_b64 exec, 3")
            e("buffer_load_dword v14, v4, s[56:59], s54 offen nt")
        e("s_mov_b64 exec, 1")
        e("v_mov_b32 v4, s35")
        e("v_mov_b32 v5, v6")
        e(f"buffer_store_dwordx2 v[4:5], v1, s[56:59], s55 offen {'' if a.tloc else ST}")
        e("s_mov_b64 exec, -1")
    e(f"v_and_b32 v12, {TAGM}, v6")
    e("ds_write_b32 v3, v12")
    if a.span:
        e("s_lshl_b32 s34, s2, 2")
        e(f"s_add_u32 s34, s34, {W_S}")
        e("v_mov_b32 v4, s86")
        e("s_mov_b64 exec, 1")
        e("buffer_store_dword v4, v1, s[56:59], s34 offen sc1")
        e("s_mov_b64 exec, -1")
    def prewrite():
        e("s_or_b32 s34, s41, s25")
        e("s_cbranch_scc1 L_nopw")
        e("s_lshr_b32 s34, s23, s24")
        e("s_and_b32 s37, s22, 1")
        e("s_lshl2_add_u32 s34, s37, s34")
        e("s_and_b32 s37, s34, 1")
        e("s_lshl_b32 s37, s37, 7")
        e("s_lshr_b32 s34, s34, 1")
        e("s_add_u32 s34, s34, s37")
        e(f"s_mul_i32 s34, s34, {YS}")
        e("s_lshr_b32 s37, s22, 1")
        e("s_lshl_b32 s37, s37, 7")
        e("s_add_u32 s34, s34, s37")
        e(f"s_add_u32 s34, s34, {W_Y}")
        e("v_and_b32 v4, 7, v0")
        e(f"v_mul_u32_u24 v4, {4*YS}, v4")
        e("v_lshrrev_b32 v5, 3, v0")
        e("v_lshl_add_u32 v4, v5, 4, v4")
        for r in range(4): e(f"v_mov_b32 v{60+r}, {r & 1}")
        for t in range(4):
            e(f"buffer_store_dwordx4 v[60:63], v4, s[56:59], s34 offen {ST}")
            if t < 3: e(f"s_add_u32 s34, s34, {32*YS}")
        g.lab("L_nopw")
    if a.prew == 1: prewrite()
    e("s_cmp_lt_u32 s26, 2")
    e("s_cbranch_scc0 L_nofix")
    e("s_mov_b32 s32, 0x7f807f80")
    e("s_mov_b32 s34, 0x00400040")
    for v in range(16, 48, 2):
        e(f"v_and_b32 v48, s32, v{v}")
        e(f"v_and_b32 v49, s32, v{v+1}")
        e("v_add_u32 v48, 0x00800080, v48")
        e("v_add_u32 v49, 0x00800080, v49")
        e("v_lshrrev_b32 v48, 9, v48")
        e("v_lshrrev_b32 v49, 9, v49")
        e(f"v_and_or_b32 v{v}, v48, s34, v{v}")
        e(f"v_and_or_b32 v{v+1}, v49, s34, v{v+1}")
    g.lab("L_nofix")
    e("v_lshlrev_b32 v13, 3, v0")
    e("s_lshr_b32 s49, s21, 2")
    e("s_lshl_b32 s48, s49, 10")
    e("s_and_b32 s42, s21, 3")
    e("s_lshl3_add_u32 s38, s42, s20")
    e("s_add_u32 s48, s48, s38")
    e("s_lshl_b32 s48, s48, 6")
    e("v_and_b32 v8, 7, v0")
    e("v_lshlrev_b32 v8, 3, v8")
    e("v_bfe_u32 v9, v0, 4, 1")
    e("v_lshl_add_u32 v8, v9, 2, v8")
    e("v_lshrrev_b32 v9, 5, v0")
    e("v_lshl_add_u32 v8, v9, 1, v8")
    e("s_lshl_b32 s30, s20, 5")
    e("s_add_u32 s30, s30, s21")
    e(f"s_mul_i32 s30, s30, {YS}")
    e(f"s_add_u32 s30, s30, {W_Y}")
    e("v_lshlrev_b32 v59, 7, v0")
    e("s_add_u32 s37, s24, 1")
    e("s_lshr_b32 s31, s23, s37")
    e("s_lshl_b32 s31, s31, 2")
    e("s_lshl3_add_u32 s31, s22, s31")
    e("s_lshl1_add_u32 s37, s24, 1")
    e("s_and_b32 s37, s37, s23")
    e("s_add_u32 s31, s31, s37")
    e("s_lshl_b32 s31, s31, 11")
    if a.pty == 3:
        msk = {}
        nrm = [p for p in range(28) if p % 4 != 1]
        for k, c in enumerate(a.qcls): msk[c] = sum(1 << nrm[4*k + x] for x in range(4))
        for k, c in enumerate(a.tcls): msk[c] = 1 << (8*k + 1) | 1 << (8*k + 5) | 1 << nrm[16 + k]
        msk[SP] = 1 << 25 | 1 << nrm[19] | 1 << nrm[20]
        e(f"s_mov_b32 s55, {msk[0]:#x}")
        for c in range(1, 8):
            e(f"s_cmp_eq_u32 s20, {c}")
            e(f"s_cselect_b32 s55, {msk[c]:#x}, s55")
    else:
        e("s_mov_b32 s55, 0xfffffff")
    def touches():
        n = 0
        e("s_mov_b32 exec_hi, 0")
        if a.ptp:
            e("s_mov_b32 exec_lo, 0xffff")
            e(f"buffer_load_dword v57, v59, s[56:59], s31 offen {a.ptf}")
            n += 1
        if a.pty:
            e("s_mov_b32 exec_lo, s55")
            e(f"buffer_load_dword v58, v59, s[56:59], s30 offen {a.ptf}")
            n += 1
        e("s_mov_b64 exec, -1")
        return n
    if a.ptime == 0: touches()
    e(f"s_mov_b32 s34, {a.spin*4}")
    e("s_and_b32 s36, s33, 0x7ff")
    e("s_mov_b32 s37, s36")
    if a.pdelay:
        e("s_cmp_lt_u32 s26, 2")
        e("s_cbranch_scc1 L_pd1")
        e(f"s_cmp_eq_u32 s2, {28*8 + SP}")
        e("s_cbranch_scc1 L_pd2")
        e(f"s_sleep {a.pdelay}")
        g.lab("L_pd1")
        if a.pdelay2: e(f"s_sleep {a.pdelay2}")
        g.lab("L_pd2")
    def mcheck(ok):
        e(f"s_xor_b64 s[38:39], s[{CP}:{CP+1}], s[36:37]")
        e(f"s_xor_b64 s[42:43], s[{CP+2}:{CP+3}], s[36:37]")
        e("s_or_b64 s[38:39], s[38:39], s[42:43]")
        e(f"s_xor_b64 s[42:43], s[{CP+4}:{CP+5}], s[36:37]")
        e("s_or_b64 s[38:39], s[38:39], s[42:43]")
        e(f"s_xor_b64 s[42:43], s[{CP+6}:{CP+7}], s[36:37]")
        e("s_or_b64 s[38:39], s[38:39], s[42:43]")
        e("s_or_b32 s38, s38, s39")
        e("s_and_b32 s38, s38, 0x7ff")
        e(f"s_cbranch_scc0 {ok}")
    if a.rep and a.rfree:
        e("s_not_b64 s[38:39], s[36:37]")
        for k in range(4): e(f"s_mov_b64 s[{MB+2*k}:{MB+2*k+1}], s[38:39]")
        e("s_mov_b32 s32, 0")
        g.lab("L_pr")
        e(f"s_load_dwordx8 s[{MB}:{MB+7}], s[52:53], s32")
        e("s_add_u32 s32, s32, 64")
        for it in range(a.rfree):
            e(f"s_sleep {a.rsleep}")
            for k in range(4): e(f"s_mov_b64 s[{CP+2*k}:{CP+2*k+1}], s[{MB+2*k}:{MB+2*k+1}]")
            mcheck("L_pok")
        e(f"s_cmp_lt_u32 s32, {64*a.rep}")
        e("s_cbranch_scc1 L_pr")
        e("s_waitcnt lgkmcnt(0)")
        for k in range(4): e(f"s_mov_b64 s[{CP+2*k}:{CP+2*k+1}], s[{MB+2*k}:{MB+2*k+1}]")
        mcheck("L_pok")
    elif a.rep:
        e("s_mov_b32 s32, 0")
        g.lab("L_pr")
        e(f"s_load_dwordx8 s[{CP}:{CP+7}], s[52:53], s32")
        e("s_add_u32 s32, s32, 64")
        if a.rsleep: e(f"s_sleep {a.rsleep}")
        e("s_waitcnt lgkmcnt(0)")
        mcheck("L_pok")
        e(f"s_cmp_lt_u32 s32, {64*a.rep}")
        e("s_cbranch_scc1 L_pr")
    if a.freerun:
        e("s_not_b64 s[38:39], s[36:37]")
        for k in range(4): e(f"s_mov_b64 s[{MB+2*k}:{MB+2*k+1}], s[38:39]")
    g.lab("L_pl")
    e(f"s_load_dwordx8 s[{MB}:{MB+7}], s[52:53], 0 glc")
    if a.freerun and not a.rep: e(f"s_sleep {a.freerun}")
    else: e("s_waitcnt lgkmcnt(0)")
    for k in range(4): e(f"s_mov_b64 s[{CP+2*k}:{CP+2*k+1}], s[{MB+2*k}:{MB+2*k+1}]")
    e(f"s_xor_b64 s[38:39], s[{CP}:{CP+1}], s[36:37]")
    e(f"s_xor_b64 s[42:43], s[{CP+2}:{CP+3}], s[36:37]")
    e("s_or_b64 s[38:39], s[38:39], s[42:43]")
    e(f"s_xor_b64 s[42:43], s[{CP+4}:{CP+5}], s[36:37]")
    e("s_or_b64 s[38:39], s[38:39], s[42:43]")
    e(f"s_xor_b64 s[42:43], s[{CP+6}:{CP+7}], s[36:37]")
    e("s_or_b64 s[38:39], s[38:39], s[42:43]")
    e("s_or_b32 s38, s38, s39")
    e("s_and_b32 s38, s38, 0x7ff")
    e("s_cbranch_scc0 L_pok")
    e("s_sub_u32 s34, s34, 1")
    e("s_cmp_lg_u32 s34, 0")
    e("s_cbranch_scc1 L_pl")
    g.lab("L_pok")
    if a.diag and a.rep: e("s_lshr_b32 s83, s32, 6")
    e("s_cmp_eq_u32 s25, 1")
    e("s_cbranch_scc1 L_nox")
    e(f"s_mov_b32 m0, {L_X}")
    for b in range(8):
        e(f"s_and_b32 s38, s{CP+b}, 0xf800")
        if a.fakex:
            if b == 0:
                e("s_mov_b64 s[8:9], s[6:7]"); e("s_movk_i32 s10, 2048"); e("s_mov_b32 s11, 0x20000")
            e("buffer_load_dwordx4 v7, s[8:11], 0 offen lds")
        else:
            e(f"buffer_load_dwordx4 v{84+b}, s[44:47], s38 offen {a.xsnt} lds")
        if b < 7:
            e(f"s_add_u32 m0, m0, {XP}")
    g.lab("L_nox")
    e("s_mov_b32 exec_hi, 0")
    e(f"buffer_load_dwordx2 v[14:15], v13, s[56:59], s54 offen {'nt' if a.tloc else LD}")
    e("s_mov_b32 exec_hi, -1")
    NX = 1
    if a.ptime == 1: NX += touches()
    e("s_mov_b32 m0, s49")
    e("s_nop 0")
    e(f"s_movrels_b32 s40, s{CP}")
    e("s_and_b32 s39, s40, 0xf800")
    e("s_add_u32 s39, s39, s48")
    e(f"buffer_load_ushort v10, v8, s[44:47], s39 offen {a.xsnt}")
    e("ds_write_b32 v3, v3 offset:4")
    g.stamp(3)
    e("s_mov_b64 exec, -1")
    e(f"s_waitcnt vmcnt({NX})")
    e("v_cmp_eq_u32 vcc, s35, v14")
    e("v_cmp_eq_u32 s[42:43], v15, v6")
    e("s_and_b32 s42, s42, vcc_lo")
    e("s_cmp_eq_u32 s42, -1")
    e("s_cselect_b32 s42, 1, 0")
    if a.probe == 1:
        e("s_cbranch_scc1 L_probe")
        for _ in range(6): e("s_sleep 127")
        g.lab("L_probe")
    if a.probe == 2: e("s_mov_b32 s42, 0")
    e("v_mov_b32 v13, s42")
    e("ds_write_b32 v3, v13 offset:16")
    e("s_cmp_eq_u32 s25, 1")
    e("s_cbranch_scc1 L_nobar")
    e("s_waitcnt lgkmcnt(0)")
    g.stamp(4)
    e("s_barrier")
    g.lab("L_nobar")
    if a.touch:
        e("s_branch T_red")
        g.lab("T_redb")
    srd(e, 48, "s14", "s15", XBYTES)
    def rowcopy():
        e("s_cmp_lt_u32 s26, 2")
        e("s_cbranch_scc0 L_nocopy")
        e("s_lshr_b32 m0, s27, 3")
        e("s_and_b32 s34, s27, 7")
        e(f"s_movrels_b32 s31, s{CP}")
        e("s_lshl_b32 s34, s34, 2")
        e("s_bfe_u32 s31, s31, 0x5000b")
        e("s_sub_u32 s31, s31, s34")
        for tk in range(4):
            e(f"s_cmp_eq_u32 s31, {tk}")
            e(f"s_cbranch_scc1 L_cp{tk}")
            for n in (2*tk, 2*tk+1):
                e(f"buffer_store_dwordx4 v[{16+4*n}:{19+4*n}], v7, s[48:51], {'s28' if n < 4 else 's29'} offen offset:{(n%4)*1024} {a.ost}")
            g.lab(f"L_cp{tk}")
        g.lab("L_nocopy")
    if a.cptime == 0: rowcopy()
    if a.ptime == 2: touches()
    e("v_mov_b32 v11, s40")
    e("v_ashrrev_i32 v13, 31, v11")
    e("v_not_b32 v13, v13")
    e("v_or_b32 v13, 0x80000000, v13")
    e("v_xor_b32 v11, v11, v13")
    e("v_and_b32 v11, 0xffff0000, v11")
    e("v_mul_f32 v11, 0xbfb8aa3b, v11")
    e("v_exp_f32 v11, v11")
    e("s_nop 0")
    e("v_add_f32 v11, 1.0, v11")
    e("v_rcp_f32 v11, v11")
    e("s_or_b32 s41, s41, s25")
    e("v_cvt_pk_bf16_f32 v11, v11, v11")
    e("v_and_b32 v11, 0xffff0000, v11")
    e("s_waitcnt vmcnt(0)")
    if a.clean:
        nrm = [p for p in range(28) if p % 4 != 1]
        tab = {}
        for k, c in enumerate(a.qcls): tab[c] = [nrm[4*k + x] for x in range(4)]
        for k, c in enumerate(a.tcls): tab[c] = [8*k + 1, 8*k + 5, nrm[16 + k], nrm[16 + k]]
        tab[SP] = [25, nrm[19], nrm[20], nrm[20]]
        pk = lambda v: sum(p << (8*x) for x, p in enumerate(v))
        e(f"s_mov_b32 s37, {pk(tab[0]):#x}")
        for c in range(1, 8):
            e(f"s_cmp_eq_u32 s20, {c}")
            e(f"s_cselect_b32 s37, {pk(tab[c]):#x}, s37")
        e("v_and_b32 v57, 24, v0")
        e("v_lshrrev_b32 v57, v57, s37")
        e("v_and_b32 v57, 31, v57")
        e("v_and_b32 v58, 7, v0")
        e("v_lshlrev_b32 v58, 4, v58")
        e("v_lshl_add_u32 v57, v57, 7, v58")
        for r in range(4): e(f"v_mov_b32 v{60+r}, v12")
    if a.cptime == 0:
        for r in range(4): e(f"v_mov_b32 v{28+r}, v12")
    e("s_cmp_eq_u32 s41, 1")
    e("s_cbranch_scc1 L_red")
    e("s_waitcnt lgkmcnt(0)")
    e("s_barrier")
    if a.cptime == 1:
        rowcopy()
    e("s_barrier")
    e("s_barrier")
    g.lab("L_red")
    if a.cptime:
        for r in range(4): e(f"v_mov_b32 v{28+r}, v12")
    g.stamp(5)
    e(f"s_mov_b32 s34, {a.spin}")
    def rload(n):
        if n == 3: e("s_mov_b32 exec_hi, 0")
        e(f"buffer_load_dwordx4 v[{16+4*n}:{19+4*n}], v7, s[56:59], s30 offen offset:{n*1024} {a.yld}")
        if n == 3: e("s_mov_b32 exec_hi, -1")
    def rcheck(n, base):
        for r in range(4):
            v = base+4*n+r
            if r == 0: e(f"v_xor_b32 v9, v{v}, v12")
            else: e(f"v_bitop3_b32 v9, v9, v{v}, v12 bitop3:0xf6")
        e(f"v_and_b32 v9, {TAGM}, v9")
        e("v_cmp_ne_u32 vcc, 0, v9")
    if a.nsw > 1:
        SB = [16, 32, 64, 96][:a.nsw]
        def sweep(b):
            for n in range(4):
                if n == 3: e("s_mov_b32 exec_hi, 0")
                e(f"buffer_load_dwordx4 v[{b+4*n}:{b+3+4*n}], v7, s[56:59], s30 offen offset:{n*1024} {a.yld}")
            e("s_mov_b32 exec_hi, -1")
        for b in SB[1:]:
            for r in range(4): e(f"v_mov_b32 v{b+12+r}, v12")
        for k, b in enumerate(SB[:-1]):
            sweep(b)
            e(f"s_sleep {a.rsl}")
        g.lab("L_rl")
        for k, b in enumerate(SB):
            sweep(SB[k-1])
            for n in range(4):
                e(f"s_waitcnt vmcnt({4*(a.nsw-1) + 3 - n})")
                for r in range(4):
                    v = b+4*n+r
                    if n == 0 and r == 0: e(f"v_xor_b32 v9, v{v}, v12")
                    else: e(f"v_bitop3_b32 v9, v9, v{v}, v12 bitop3:0xf6")
                if n == 1:
                    e(f"v_pk_add_f32 v[48:49], v[{b}:{b+1}], v[{b+4}:{b+5}]")
                    e(f"v_pk_add_f32 v[50:51], v[{b+2}:{b+3}], v[{b+6}:{b+7}]")
                if n >= 2:
                    e(f"v_pk_add_f32 v[48:49], v[48:49], v[{b+4*n}:{b+4*n+1}]")
                    e(f"v_pk_add_f32 v[50:51], v[50:51], v[{b+4*n+2}:{b+4*n+3}]")
            e(f"v_and_b32 v9, {TAGM}, v9")
            e("v_cmp_ne_u32 vcc, 0, v9")
            e("s_cbranch_vccz L_rsum")
        e("s_sub_u32 s34, s34, 1")
        e("s_cmp_lg_u32 s34, 0")
        e("s_cbranch_scc1 L_rl")
        g.lab("L_rsum")
    elif a.pend == 0:
        g.lab("L_rl")
        for n in range(4): rload(n)
        for n in range(4):
            e(f"s_waitcnt vmcnt({3-n})")
            for r in range(4):
                v = 16+4*n+r
                if n == 0 and r == 0: e(f"v_xor_b32 v9, v{v}, v12")
                else: e(f"v_bitop3_b32 v9, v9, v{v}, v12 bitop3:0xf6")
            if n == 1:
                e("v_pk_add_f32 v[32:33], v[16:17], v[20:21]")
                e("v_pk_add_f32 v[34:35], v[18:19], v[22:23]")
            if n == 2:
                e("v_pk_add_f32 v[32:33], v[32:33], v[24:25]")
                e("v_pk_add_f32 v[34:35], v[34:35], v[26:27]")
        e(f"v_and_b32 v9, {TAGM}, v9")
        e("v_cmp_ne_u32 vcc, 0, v9")
        e("v_pk_add_f32 v[16:17], v[32:33], v[28:29]")
        e("v_pk_add_f32 v[18:19], v[34:35], v[30:31]")
        e("s_cbranch_vccz L_rok")
        if a.rretry: e(f"s_sleep {a.rretry}")
        e("s_sub_u32 s34, s34, 1")
        e("s_cmp_lg_u32 s34, 0")
        e("s_cbranch_scc1 L_rl")
    else:
        M = [60, 62, 64, 66]
        for n in range(3): e(f"s_mov_b64 s[{M[n]}:{M[n]+1}], -1")
        e(f"s_mov_b32 s{M[3]}, -1"); e(f"s_mov_b32 s{M[3]+1}, 0")
        g.lab("L_rl")
        for n in range(4):
            e(f"s_mov_b64 exec, s[{M[n]}:{M[n]+1}]")
            e(f"buffer_load_dwordx4 v[{16+4*n}:{19+4*n}], v7, s[56:59], s30 offen offset:{n*1024} {a.yld}")
        e("s_mov_b64 exec, -1")
        for n in range(4):
            e(f"s_waitcnt vmcnt({3-n})")
            rcheck(n, 16)
            e(f"s_mov_b64 s[{M[n]}:{M[n]+1}], vcc")
            if n: e(f"s_or_b64 s[42:43], s[42:43], vcc")
            else: e("s_mov_b64 s[42:43], vcc")
        e("s_cbranch_scc0 L_rsum")
        if a.rretry: e(f"s_sleep {a.rretry}")
        e("s_sub_u32 s34, s34, 1")
        e("s_cmp_lg_u32 s34, 0")
        e("s_cbranch_scc1 L_rl")
        g.lab("L_rsum")
        for h in (0, 2):
            e(f"v_pk_add_f32 v[{16+h}:{17+h}], v[{16+h}:{17+h}], v[{20+h}:{21+h}]")
            e(f"v_pk_add_f32 v[{24+h}:{25+h}], v[{24+h}:{25+h}], v[{28+h}:{29+h}]")
        for h in (0, 2):
            e(f"v_pk_add_f32 v[{16+h}:{17+h}], v[{16+h}:{17+h}], v[{24+h}:{25+h}]")
    if a.touch:
        e("s_branch L_rok")
        g.lab("T_red"); e("s_branch T_redb")
    g.lab("L_rok")
    if a.clean:
        e("s_cmp_eq_u32 s41, s25")
        e("s_cbranch_scc1 L_nocl")
        e("s_barrier")
        g.lab("L_nocl")
    g.stamp(6)
    if a.diag: e(f"s_sub_u32 s84, {a.spin+1}, s34")
    e("s_nop 0")
    R = 48 if a.nsw > 1 else 16
    e(f"v_permlane32_swap_b32 v{R}, v{R+1}")
    e(f"v_permlane32_swap_b32 v{R+2}, v{R+3}")
    e("v_lshlrev_b32 v10, 16, v10")
    e(f"v_add_f32 v{R}, v{R}, v{R+1}")
    e(f"v_add_f32 v{R+2}, v{R+2}, v{R+3}")
    e("s_nop 1")
    e(f"v_permlane16_swap_b32 v{R}, v{R+2}")
    e("s_nop 0")
    e(f"v_add_f32 v{R}, v{R}, v{R+2}")
    e("s_nop 1")
    e(f"v_add_f32_dpp v{R}, v{R}, v{R} row_ror:8 row_mask:0xf bank_mask:0xf")
    e("s_mov_b32 exec_lo, 0x00ff00ff")
    e("s_mov_b32 exec_hi, 0x00ff00ff")
    e(f"v_cvt_pk_bf16_f32 v{R}, v{R}, v{R}")
    e(f"v_and_b32 v{R}, 0xffff0000, v{R}")
    e(f"v_mul_f32 v{R}, v{R}, v11")
    e(f"v_cvt_pk_bf16_f32 v{R}, v{R}, v{R}")
    e(f"v_and_b32 v{R}, 0xffff0000, v{R}")
    e(f"v_fma_f32 v{R}, v10, 0, v{R}")
    e(f"v_add_f32 v{R}, v10, v{R}")
    e(f"v_cvt_pk_bf16_f32 v{R}, v{R}, v{R}")
    e(f"buffer_store_short v{R}, v8, s[48:51], s39 offen {a.ost2}")
    if a.clean:
        e("s_mov_b32 exec_lo, -1")
        e("s_mov_b32 exec_hi, 0")
        e(f"buffer_store_dwordx4 v[60:63], v57, s[56:59], s30 offen {ST}")
    e(f"s_cmp_eq_u32 s2, {28*8 + SP}")
    e("s_cbranch_scc0 L_nobump")
    e("s_mov_b64 exec, 1")
    e(f"s_mov_b32 s30, {W_E}")
    e("buffer_store_dword v6, v1, s[56:59], s30 offen sc1")
    g.lab("L_nobump")
    g.stamp(7)
    if a.hold:
        e("s_cmp_eq_u32 s2, 1")
        e("s_cbranch_scc0 L_end")
        g.lab("L_hold")
        e("s_memrealtime s[68:69]")
        e("s_waitcnt lgkmcnt(0)")
        e("s_sub_u32 s68, s68, s86")
        e(f"s_cmp_lt_u32 s68, {a.hold}")
        e("s_cbranch_scc1 L_hold")
    if a.diag:
        g.lab("L_diag")
        e("s_waitcnt vmcnt(0) lgkmcnt(0)")
        g.stamp(10)
        e("s_mov_b64 exec, 1")
        e(f"s_add_u32 s56, s18, {W_DIAG}")
        e("s_addc_u32 s57, s19, 0")
        e("s_mov_b32 s58, 0x100000")
        e("s_mov_b32 s59, 0x20000")
        e("s_mul_i32 s30, s2, 5"); e("s_add_u32 s30, s30, s3"); e("s_lshl_b32 s30, s30, 6")
        e("v_mov_b32 v1, 0")
        e("s_mov_b32 s70, s86")
        for k in range(16):
            e(f"v_mov_b32 v2, s{70+k}")
            e(f"buffer_store_dword v2, v1, s[56:59], s30 offen offset:{4*k}")
    g.lab("L_end")
    e("s_endpgm")
    g.lab("L_code_end")

    hdr = open("standalone__moe_arch_mod__sampling.s.ref").read().split("; Override launch")[0] if not a.nohdr else ""
    src = hdr + f"; @launch grid=(256,1,1) block=(320,1,1) lds={a.lds or L_END}\n"
    ALIGN = ".p2align 8" if not a.align else ".p2align 12" + (f"\n.fill {(4096-768)//4}, 4, 0xbf810000\n.p2align 8" if a.align == 2 else "")
    src += f""".amdgcn_target "amdgcn-amd-amdhsa--gfx950"
.text
.globl {KN}
{ALIGN}
.type {KN},@function
{KN}:
""" + "\n".join(x for x in g.L if x) + f"""
.section .rodata,"a"
.p2align 6
.amdhsa_kernel {KN}
  .amdhsa_next_free_vgpr {a.vgpr}
  .amdhsa_next_free_sgpr 96
  .amdhsa_accum_offset {min(a.vgpr,256)}
  .amdhsa_group_segment_fixed_size 0
  .amdhsa_kernarg_size 64
  .amdhsa_user_sgpr_count 2
  .amdhsa_user_sgpr_kernarg_segment_ptr 1
  .amdhsa_system_sgpr_workgroup_id_x 1
  .amdhsa_float_denorm_mode_32 3
.end_amdhsa_kernel
"""
    src += f'; W_S={W_S + a.wsoff}\n'
    return src

def parse(argv):
    p = argparse.ArgumentParser()
    p.add_argument("-o", default="/dev/stdout")
    for k, v in dict(diag=0, depth=5, sdepth=4, spin=20000, wsoff=0, nohdr=1, hold=0, span=0, special=6, rbar=1, lds=0, vgpr=120,
                     tail=4, c1=4, gearly=0, rdelay=-1, agdelay=-1, freerun=1, pretouch=1, hintg=24, cmid=2, pend=0, cpace=8, npoll=3, psleep=2, gack=1, gsleep=0, gretry=0, rretry=0, ptp=1, cpre=4, npre=0, clate=1, pty=3, ipf=1, sonly=0, lin=0, late=0, rcls=1, rfree=0, fakex=0, rep=16, rs=32, tloc=1, pdelay2=0, rsleep=0, noctl=0, ptime=1, cpage=1, gnow=1, nsw=1, rsl=4, prew=0, clean=0, probe=0, trace=0, mark=1, pdelay=30, rotn=0x6622, rots=0x55553333, rack=0, df=2, kp=0, latet=16, touch=1, align=2, t0=0, keep=0, scpre=3, d0=0, sd0=0, ratom=1, gk=1, cptime=0, cmap=0x76543210).items():
        p.add_argument("--" + k, type=lambda x: int(x, 0), default=v)
    for k, v in dict(nt="nt", st="sc1", ld="sc1", ost="", ost2="", xnt="nt", wrnt="", xsnt="", ptf="nt", ipff="", inj="", rpt="", yst="", yld="sc1", pst="", qcls="1237", tcls="045").items():
        p.add_argument("--" + k, default=v)
    p.add_argument("--only", default="")
    a = p.parse_args(argv)
    for k in ("nt", "st", "ld", "ost", "ost2", "xnt", "wrnt", "xsnt", "ptf", "ipff", "yst", "yld", "pst", "inj", "rpt"):
        setattr(a, k, getattr(a, k).replace("+", " ").replace("none", ""))
    a.qcls = [int(x) for x in a.qcls]; a.tcls = [int(x) for x in a.tcls]
    a.only = [int(x) for x in a.only.split(",") if x]
    return a

if __name__ == "__main__":
    a = parse(sys.argv[1:])
    open(a.o, "w").write(gen(a))
```

```python
import sys, argparse

KN = "standalone__moe_arch_mod__sampling_kernel"
WB = 1024*3584*2
XBYTES = 8*32*1024*2

L_B = 0
L_C = 65536
L_X = 98304
XP = 1056
L_H = L_X + 8*XP
HP = 160
L_T = L_H + 8*HP
L_END = L_T + 64

W_P = 0
W_Y = 56*8*2048
W_R = W_Y + 256*7168
W_M = W_R + 64*128
W_E = W_M + 256*128
W_END = W_E + 256
W_DIAG = 4 << 20

TAGM = 0x3ff

class G:
    def __init__(s, a):
        s.a = a; s.L = []; s.uid = 0
    def e(s, t): s.L.append("    " + t)
    def lab(s, t): s.L.append(t + ":")
    def u(s, p):
        s.uid += 1; return f"{p}_{s.uid}"
    def stamp(s, k, wait=True):
        if s.a.diag and (k == 0 or not s.a.only or k in s.a.only):
            if not wait:
                s.e("s_memrealtime s[86:87]"); return
            s.e("s_memrealtime s[68:69]")
            s.e("s_waitcnt lgkmcnt(0)")
            s.e(f"s_mov_b32 s{70+k}, s68")

def srd(e, r, lo, hi, n):
    e(f"s_mov_b32 s{r}, {lo}"); e(f"s_mov_b32 s{r+1}, {hi}"); e(f"s_mov_b32 s{r+2}, {n}"); e(f"s_mov_b32 s{r+3}, 0x20000")

def gen(a):
    g = G(a); e = g.e; D = a.depth
    NT = a.nt; ST = a.st; LD = a.ld
    SP = a.special
    g.stamp(0, wait=False)
    if a.hold and not a.diag: e("s_memrealtime s[86:87]")
    e("s_load_dwordx16 s[4:19], s[0:1], 0")
    if a.diag:
        for k in range(1, 16): e(f"s_mov_b32 s{70+k}, 0")
    e("s_cmp_ge_u32 s2, 256")
    e("s_cbranch_scc1 L_end")
    e("v_lshrrev_b32 v1, 6, v0")
    e("v_and_b32 v0, 63, v0")
    e("s_and_b32 s20, s2, 7")
    e("v_readfirstlane_b32 s3, v1")
    e("s_lshr_b32 s21, s2, 3")
    e("s_mov_b32 s24, 0")
    e("s_mov_b32 s25, 0")
    e("s_and_b32 s23, s21, 3")
    e(f"s_cmp_eq_u32 s20, {SP}")
    e("s_cbranch_scc1 L_special")
    e(f"s_cmp_gt_u32 s20, {SP}")
    e("s_subb_u32 s22, s20, 0")
    e("s_lshl_b32 s22, s22, 3")
    e("s_lshr_b32 s27, s21, 2")
    e("s_cmp_lt_u32 s21, 12")
    e("s_cbranch_scc1 L_dec")
    e("s_sub_u32 s27, s27, 1")
    e("s_cmp_ge_u32 s21, 20")
    e("s_cbranch_scc1 L_dec")
    e("s_mov_b32 s27, 3")
    e("s_sub_u32 s23, s21, 12")
    e("s_mov_b32 s24, 1")
    e("s_branch L_dec")
    g.lab("L_special")
    e("s_lshr_b32 s22, s21, 2")
    e("s_lshl_b32 s22, s22, 3")
    e("s_mov_b32 s27, 7")
    e("s_cmp_ge_u32 s21, 28")
    e("s_cselect_b32 s25, 1, 0")
    g.lab("L_dec")
    e("s_add_u32 s22, s22, s27")
    e("s_sub_u32 s26, s20, 1")
    e("s_and_b32 s41, s23, s24")
    e("s_cmp_eq_u32 s3, 4")
    e("s_cbranch_scc1 L_ctl")
    e("s_cmp_eq_u32 s25, 1")
    e("s_cbranch_scc1 L_end")
    e("v_bfe_u32 v1, v0, 1, 2")
    e("v_bfe_u32 v2, v0, 3, 1")
    e("v_lshl_add_u32 v1, v2, 3, v1")
    e("v_lshrrev_b32 v2, 4, v0")
    e("v_and_b32 v3, 1, v0")
    e("v_lshl_add_u32 v3, v2, 1, v3")
    e("v_lshlrev_b32 v3, 4, v3")
    e("v_mul_u32_u24 v4, 7168, v1")
    e("v_add_u32 v4, v4, v3")
    e("v_lshl_add_u32 v5, v1, 11, v3")
    e("s_and_b32 s28, s3, 1")
    e("s_lshl_b32 s28, s28, 4")
    e("s_lshr_b32 s29, s3, 1")
    e("s_lshl_b32 s29, s29, 2")
    e("s_add_u32 s28, s28, s29")
    e("s_add_u32 s30, s24, 1")
    e("s_lshl_b32 s31, s24, 1")
    e("s_or_b32 s31, s31, 1")
    e("s_sub_u32 s32, 9, s24")
    e("s_lshr_b32 s33, s23, s30")
    e("s_and_b32 s34, s23, s31")
    e("s_lshl_b32 s35, s34, s32")
    e("s_add_u32 s36, s35, s28")
    e("s_mul_i32 s36, s36, 7168")
    e("s_lshl_b32 s37, s22, 7")
    e("s_add_u32 s36, s36, s37")
    e("s_lshl_b32 m0, s3, 10")
    e(f"s_mov_b32 s46, {WB}")
    e("s_mov_b32 s47, 0x20000")
    e("s_cmp_eq_u32 s33, 1")
    e("s_waitcnt lgkmcnt(0)")
    e("s_cselect_b32 s44, s10, s8")
    e("s_cselect_b32 s45, s11, s9")
    g.stamp(1)
    if a.rbar:
        e("s_cmp_lt_u32 s26, 2")
        e("s_cbranch_scc0 L_norb")
        e("s_barrier")
        g.lab("L_norb")
    e("s_cmp_eq_u32 s24, 1")
    e("s_cbranch_scc1 L_slow")

    def cload(j):
        rows = 32*(j >> 2) + (0, 16, 4, 20)[j & 3]
        e(f"s_add_u32 m0, s42, {j*1024}")
        e(f"s_add_u32 s43, s39, {rows*2048}")
        e(f"buffer_load_dwordx4 v5, s[48:51], s43 offen {NT} lds")

    def bphase(nb, d, tag):
        n1 = nb - a.tail*nb//16
        half = nb//2
        e(f"s_mov_b32 s43, {nb}")
        g.lab(f"L_bl{tag}")
        e(f"s_waitcnt vmcnt({d-1})")
        e(f"buffer_load_dwordx4 v4, s[44:47], s36 offen {NT} lds")
        e(f"s_add_u32 s36, s36, {32*7168}")
        e("s_add_u32 m0, m0, 4096")
        e("s_sub_u32 s43, s43, 1")
        e("s_cmp_lg_u32 s43, 0")
        e(f"s_cbranch_scc1 L_bl{tag}")
        srd(e, 48, "s12", "s13", WB)
        e("s_lshr_b32 s38, s23, s24")
        e("s_lshl_b32 s38, s38, 2")
        e("s_add_u32 s38, s38, s3")
        e("s_lshl_b32 s39, s22, 17")
        e("s_lshl_b32 s40, s38, 7")
        e("s_add_u32 s39, s39, s40")
        e("s_lshl_b32 s42, s3, 13")
        e(f"s_add_u32 s42, s42, {L_C}")
        e("v_lshrrev_b32 v1, 5, v0")
        e("v_and_b32 v3, 31, v0")
        e("v_lshlrev_b32 v6, 3, v3")
        e("v_lshl_add_u32 v6, v1, 10, v6")
        e("v_add_u32 v7, s42, v6")
        e("s_lshl_b32 s43, s3, 8")
        e("v_add_u32 v6, s43, v6")
        e("v_and_b32 v8, 7, v0")
        e("v_bfe_u32 v9, v0, 3, 1")
        e(f"v_mul_u32_u24 v10, {XP}, v8")
        e("v_lshl_add_u32 v10, v2, 4, v10")
        e(f"v_mul_u32_u24 v11, {half*64}, v9")
        e("v_add_u32 v10, v10, v11")
        if nb == 8:
            e("s_and_b32 s43, s34, 1")
            e("s_lshl_b32 s43, s43, 9")
            e(f"s_add_u32 s43, s43, {L_X}")
            e("v_add_u32 v10, s43, v10")
        else:
            e(f"v_add_u32 v10, {L_X}, v10")
        e("s_lshl_b32 s60, s22, 3")
        e("s_lshl_b32 s52, s33, 2")
        e("s_add_u32 s52, s52, s60")
        e("s_add_u32 s52, s52, s34")
        e("s_lshl_b32 s52, s52, 11")
        e("s_lshl_b32 s53, s3, 6")
        e("s_add_u32 s52, s52, s53")
        e(f"s_add_u32 s56, s18, {a.wsoff}")
        e("s_addc_u32 s57, s19, 0")
        e(f"s_mov_b32 s58, {W_END}")
        e("s_mov_b32 s59, 0x20000")
        e("v_lshlrev_b32 v14, 8, v8")
        e("v_lshl_add_u32 v14, v2, 4, v14")
        e(f"v_mov_b32 v15, {TAGM}")
        e(f"v_mov_b32 v13, {L_T}")
        sk = g.u("L_noc")
        XF = 16; WF = 48
        def wread(k):
            e(f"ds_read_b64_tr_b16 v[{WF+4*k}:{WF+4*k+1}], v6 offset:{k*4096}")
            e(f"ds_read_b64_tr_b16 v[{WF+4*k+2}:{WF+4*k+3}], v6 offset:{k*4096+2048}")
        def mfma(k):
            acc = 112 if k < half else 116
            xf = XF + 4*(k % half)
            cin = "0" if k in (0, half) else f"v[{acc}:{acc+3}]"
            e(f"v_mfma_f32_16x16x32_bf16 v[{acc}:{acc+3}], v[{WF+4*k}:{WF+4*k+3}], v[{xf}:{xf+3}], {cin}")
        def cgroup(js, lab):
            if nb == 8:
                e("s_cmp_eq_u32 s41, 1"); e(f"s_cbranch_scc1 {sk}{lab}")
            for j in js: cload(j)
            if nb == 8: g.lab(f"{sk}{lab}")
        e(f"s_waitcnt vmcnt({nb - n1})")
        g.stamp(2)
        e("s_barrier")
        g.stamp(3)
        cgroup(range(0, a.c1), "a")
        for k in range(n1): wread(k)
        cgroup(range(a.c1, 8), "b")
        e("s_waitcnt lgkmcnt(0)")
        g.stamp(4)
        e("s_barrier")
        g.stamp(5)
        for f in range(half):
            e(f"ds_read_b128 v[{XF+4*f}:{XF+4*f+3}], v10 offset:{f*64}")
        e("ds_read_b32 v12, v13")
        nA = n1//2
        for k in range(nA):
            e(f"s_waitcnt lgkmcnt({max(half - k, 0)})")
            mfma(k)
        if nb == 8:
            e("s_cmp_eq_u32 s41, 1"); e(f"s_cbranch_scc1 {sk}d")
        e("s_waitcnt vmcnt(8)")
        if nb == 8:
            e(f"s_branch {sk}e")
            g.lab(f"{sk}d")
            e("s_waitcnt vmcnt(0)")
            g.lab(f"{sk}e")
        e("s_waitcnt lgkmcnt(0)")
        e("s_barrier")
        for k in range(n1, nb): wread(k)
        for k in range(nA, n1): mfma(k)
        for k in range(n1, nb):
            e(f"s_waitcnt lgkmcnt({2*(nb-1-k)})")
            mfma(k)

    bphase(16, D, "n")
    e("s_branch L_pub")
    g.lab("L_slow")
    bphase(8, a.sdepth or max(2, (D+1)//2), "s")
    g.lab("L_pub")
    e("s_lshl_b32 s62, s60, 11")
    e("s_lshl_b32 s53, s3, 9")
    e("s_add_u32 s62, s62, s53")
    e("s_add_u32 s63, s62, 8192")
    e("s_add_u32 s54, s62, 4096")
    e("s_add_u32 s55, s63, 4096")
    e("s_nop 1")
    for r in range(4):
        e(f"v_add_f32_dpp v{112+r}, v{116+r}, v{112+r} row_ror:8 row_mask:0xf bank_mask:0xf")
    e("s_mov_b32 exec_lo, 0x00ff00ff")
    e("s_mov_b32 exec_hi, 0x00ff00ff")
    for r in range(4):
        e(f"v_bfi_b32 v{112+r}, v15, v12, v{112+r}")
    e(f"buffer_store_dwordx4 v[112:115], v14, s[56:59], s52 offen {ST}")
    e("s_mov_b64 exec, -1")
    g.stamp(6)
    e("s_cmp_eq_u32 s41, 1")
    e("s_cbranch_scc1 L_cdone")
    e("v_lshlrev_b32 v14, 3, v0")
    e(f"v_mul_u32_u24 v16, {HP}, v8")
    e("v_lshl_add_u32 v16, v2, 4, v16")
    e(f"v_add_u32 v16, {L_H}, v16")
    e("s_lshl_b32 s60, s3, 1")
    e("v_add_u32 v17, s60, v1")
    e(f"v_mul_u32_u24 v17, {HP}, v17")
    e("v_lshl_add_u32 v17, v3, 2, v17")
    e(f"v_add_u32 v17, {L_H}, v17")
    e("s_mov_b32 s60, 229376")
    e("v_mul_lo_u32 v19, v8, s60")
    e("v_lshl_add_u32 v19, v9, 6, v19")
    e("v_lshl_add_u32 v19, v2, 4, v19")
    e(f"s_mul_i32 s52, s38, {2*7168}")
    e("s_lshl_b32 s53, s22, 7")
    e("s_add_u32 s52, s52, s53")
    e(f"s_add_u32 s52, s52, {W_Y}")
    e("s_add_u32 s53, s52, 7168")
    e(f"s_mov_b32 s61, {a.spin}")
    def gloads(slow):
        e(f"buffer_load_dwordx2 v[20:21], v14, s[56:59], s62 offen {LD}")
        e(f"buffer_load_dwordx2 v[22:23], v14, s[56:59], s62 offen offset:2048 {LD}")
        e(f"buffer_load_dwordx2 v[24:25], v14, s[56:59], s63 offen {LD}")
        e(f"buffer_load_dwordx2 v[26:27], v14, s[56:59], s63 offen offset:2048 {LD}")
        if slow:
            e(f"buffer_load_dwordx2 v[28:29], v14, s[56:59], s54 offen {LD}")
            e(f"buffer_load_dwordx2 v[30:31], v14, s[56:59], s54 offen offset:2048 {LD}")
            e(f"buffer_load_dwordx2 v[32:33], v14, s[56:59], s55 offen {LD}")
            e(f"buffer_load_dwordx2 v[34:35], v14, s[56:59], s55 offen offset:2048 {LD}")
    def creads():
        for ks in range(2):
            for tt in range(4):
                r = 48 + 16*ks + 4*tt
                e(f"ds_read_b64_tr_b16 v[{r}:{r+1}], v7 offset:{ks*4096+tt*256}")
                e(f"ds_read_b64_tr_b16 v[{r+2}:{r+3}], v7 offset:{ks*4096+tt*256+2048}")
    def gather(slow):
        t = "s" if slow else "n"
        n = 8 if slow else 4
        e(f"s_waitcnt vmcnt({1 + a.gearly})")
        g.stamp(7)
        gloads(slow)
        e(f"s_waitcnt vmcnt({n+1})")
        g.stamp(11)
        creads()
        if a.diag and (not a.only or 12 in a.only):
            e(f"s_waitcnt vmcnt({n})")
            g.stamp(12)
            e(f"s_waitcnt vmcnt(0)")
            g.stamp(13)
        e(f"s_branch L_gc{t}")
        g.lab(f"L_g{t}")
        gloads(slow)
        g.lab(f"L_gc{t}")
        e("s_waitcnt vmcnt(0)")
        e("v_xor_b32 v18, v20, v12")
        for r in range(21, 20 + 2*n):
            e(f"v_bitop3_b32 v18, v18, v{r}, v12 bitop3:0xf6")
        e("v_and_b32 v18, v15, v18")
        e("v_cmp_ne_u32 vcc, 0, v18")
        e(f"s_cbranch_vccz L_gok{t}")
        e("s_sub_u32 s61, s61, 1")
        e("s_cmp_lg_u32 s61, 0")
        e(f"s_cbranch_scc1 L_g{t}")
        g.lab(f"L_gok{t}")
        if slow:
            e("v_pk_add_f32 v[20:21], v[20:21], v[28:29]")
            e("v_pk_add_f32 v[22:23], v[22:23], v[30:31]")
            e("v_pk_add_f32 v[24:25], v[24:25], v[32:33]")
            e("v_pk_add_f32 v[26:27], v[26:27], v[34:35]")
    e("s_cmp_eq_u32 s24, 1")
    e("s_cbranch_scc0 L_gnorm")
    gather(True)
    e("s_branch L_act")
    g.lab("L_gnorm")
    gather(False)
    g.lab("L_act")
    g.stamp(8)
    if a.diag: e(f"s_sub_u32 s84, {a.spin+1}, s61")
    e("v_add_f32 v20, v20, v22"); e("v_add_f32 v21, v21, v23")
    e("v_add_f32 v24, v24, v26"); e("v_add_f32 v25, v25, v27")
    e("v_cvt_pk_bf16_f32 v22, v20, v21")
    e("v_cvt_pk_bf16_f32 v26, v24, v25")
    e("v_lshlrev_b32 v20, 16, v22")
    e("v_and_b32 v21, 0xffff0000, v22")
    e("v_mul_f32 v28, 0xbfb8aa3b, v20")
    e("v_mul_f32 v29, 0xbfb8aa3b, v21")
    e("v_exp_f32 v28, v28")
    e("v_exp_f32 v29, v29")
    e("v_lshlrev_b32 v24, 16, v26")
    e("v_add_f32 v28, 1.0, v28")
    e("v_add_f32 v29, 1.0, v29")
    e("v_rcp_f32 v28, v28")
    e("v_rcp_f32 v29, v29")
    e("v_and_b32 v25, 0xffff0000, v26")
    e("v_mul_f32 v20, v20, v28")
    e("v_mul_f32 v21, v21, v29")
    e("v_cvt_pk_bf16_f32 v22, v20, v21")
    e("v_lshlrev_b32 v20, 16, v22")
    e("v_and_b32 v21, 0xffff0000, v22")
    e("v_mul_f32 v20, v20, v24")
    e("v_mul_f32 v21, v21, v25")
    e("v_cvt_pk_bf16_f32 v22, v20, v21")
    e("ds_write_b32 v17, v22")
    e("v_cmp_eq_u32 vcc, 1, v9")
    e("s_waitcnt lgkmcnt(0)")
    e("s_barrier")
    e("ds_read_b128 v[20:23], v16")
    e("ds_read_b128 v[24:27], v16 offset:64")
    e("s_waitcnt lgkmcnt(1)")
    for tt in range(4):
        e(f"v_mfma_f32_16x16x32_bf16 v[{80+4*tt}:{83+4*tt}], v[{48+4*tt}:{51+4*tt}], v[20:23], 0")
    e("s_waitcnt lgkmcnt(0)")
    for tt in range(4):
        e(f"v_mfma_f32_16x16x32_bf16 v[{80+4*tt}:{83+4*tt}], v[{64+4*tt}:{67+4*tt}], v[24:27], v[{80+4*tt}:{83+4*tt}]")
    e("s_nop 5")
    for r in range(4):
        e(f"v_cndmask_b32 v{80+r}, v{80+r}, v{84+r}, vcc")
    for r in range(4):
        e(f"v_bfi_b32 v{80+r}, v15, v12, v{80+r}")
    e(f"buffer_store_dwordx4 v[80:83], v19, s[56:59], s52 offen {ST}")
    for r in range(4):
        e(f"v_cndmask_b32 v{88+r}, v{88+r}, v{92+r}, vcc")
    for r in range(4):
        e(f"v_bfi_b32 v{88+r}, v15, v12, v{88+r}")
    e(f"buffer_store_dwordx4 v[88:91], v19, s[56:59], s53 offen {ST}")
    g.stamp(9)
    if a.rdelay < 0:
        e("s_waitcnt vmcnt(0)")
    e("s_barrier")
    g.lab("L_cdone")
    if a.diag:
        e("s_branch L_diag")
    e("s_endpgm")

    MB = 88
    CP = 60
    g.lab("L_ctl")
    e("s_setprio 3")
    e("s_lshl_b32 s27, s26, 5")
    e("s_add_u32 s27, s27, s21")
    e("v_lshlrev_b32 v7, 4, v0")
    e("s_lshl_b32 s28, s27, 13")
    e("s_add_u32 s29, s28, 4096")
    e("v_mov_b32 v1, 0")
    e(f"s_mov_b32 s30, {W_E}")
    e("s_lshl_b32 s36, s2, 7")
    e(f"s_add_u32 s36, s36, {W_M}")
    e(f"s_mov_b32 s58, {W_END}")
    e("s_mov_b32 s59, 0x20000")
    e(f"s_mov_b32 s46, {XBYTES}")
    e("s_mov_b32 s47, 0x20000")
    e("s_mov_b32 s50, 2048")
    e("s_mov_b32 s51, 0x20000")
    e("s_cmp_lt_u32 s26, 2")
    e("s_waitcnt lgkmcnt(0)")
    e("s_mov_b32 s44, s4"); e("s_mov_b32 s45, s5")
    e("s_cbranch_scc0 L_norl")
    e("s_mov_b32 s48, s6"); e("s_mov_b32 s49, s7")
    e(f"buffer_load_dwordx4 v[48:51], v7, s[48:51], 0 offen {a.wrnt}")
    e(f"buffer_load_dwordx4 v[52:55], v7, s[48:51], 0 offen offset:1024 {a.wrnt}")
    for n in range(8):
        e(f"buffer_load_dwordx4 v[{16+4*n}:{19+4*n}], v7, s[44:47], {'s28' if n < 4 else 's29'} offen offset:{(n%4)*1024} {a.xnt}")
    g.lab("L_norl")
    e(f"s_add_u32 s56, s18, {a.wsoff}")
    e("s_addc_u32 s57, s19, 0")
    e("buffer_load_dword v6, v1, s[56:59], s30 offen sc1")
    if a.pretouch:
        e("buffer_load_dword v2, v1, s[56:59], s36 offen")
    g.stamp(1)
    if a.rbar:
        e("s_cmp_lt_u32 s26, 2")
        e("s_cbranch_scc0 L_norb2")
        e("s_barrier")
        g.lab("L_norb2")
    e("s_add_u32 s52, s56, s36")
    e("s_addc_u32 s53, s57, 0")
    e("s_lshr_b32 s37, s23, s24")
    e("s_and_b32 s37, s37, 1")
    e("s_lshl_b32 s37, s37, 10")
    e("v_add_u32 v84, s37, v7")
    for b in range(1, 8):
        e(f"v_add_u32 v{84+b}, {b*65536}, v84")
    e("s_cmp_lt_u32 s26, 2")
    e("s_cbranch_scc1 L_route")
    e(f"s_waitcnt vmcnt({1 if a.pretouch else 0})")
    e("v_add_u32 v6, 1, v6")
    e("s_branch L_poll")
    g.lab("L_route")
    PT = 1 if a.pretouch else 0
    e("s_and_b32 s30, s27, 7")
    e("s_lshl_b32 s30, s30, 13")
    e(f"s_sub_u32 s30, {31 << 11}, s30")
    e("s_lshl_b32 s31, s27, 7")
    e(f"s_add_u32 s31, s31, {W_R}")
    for tk in range(4):
        for hlf in range(2):
            n = 2*tk + hlf
            e(f"s_waitcnt vmcnt({7 - n + 1 + PT})")
            for r in range(4):
                src = "0" if (hlf == 0 and r == 0) else f"v{8+tk}"
                e(f"v_dot2_f32_bf16 v{8+tk}, v{16+4*n+r}, v{48+4*hlf+r}, {src}")
    g.stamp(12)
    e("s_nop 1")
    e("s_nop 0")
    e("v_permlane32_swap_b32 v8, v9")
    e("v_permlane32_swap_b32 v10, v11")
    e("v_bfe_u32 v13, v0, 4, 1")
    e("v_add_f32 v8, v8, v9")
    e("v_add_f32 v10, v10, v11")
    e("v_lshrrev_b32 v14, 5, v0")
    e("v_lshl_add_u32 v13, v13, 1, v14")
    e("v_permlane16_swap_b32 v8, v10")
    e("v_lshlrev_b32 v13, 11, v13")
    e("v_add_f32 v8, v8, v10")
    e("v_sub_u32 v12, s30, v13")
    for sh in (8, 4, 2, 1):
        e("s_nop 0" if sh == 8 else "s_nop 1")
        e(f"v_add_f32_dpp v8, v8, v8 row_ror:{sh} row_mask:0xf bank_mask:0xf")
    e("s_movk_i32 s32, 0x7ff")
    e(f"s_waitcnt vmcnt({PT})")
    e("v_add_u32 v6, 1, v6")
    e("v_cvt_pk_bf16_f32 v9, v8, v8")
    e("v_cmp_u_f32 vcc, v8, v8")
    e("v_and_or_b32 v12, v6, s32, v12")
    e("v_ashrrev_i32 v10, 31, v9")
    e("v_or_b32 v10, 0x80000000, v10")
    e("v_xor_b32 v9, v9, v10")
    e("v_cndmask_b32 v9, v9, 0, vcc")
    e("v_and_b32 v9, 0xffff0000, v9")
    e("v_or_b32 v8, v9, v12")
    e("v_or_b32 v9, v9, v12")
    e("s_nop 1")
    e("v_permlane32_swap_b32 v8, v9")
    e("s_nop 0")
    e("v_max_u32 v8, v8, v9")
    e("v_max_u32 v9, v8, v9")
    e("s_nop 1")
    e("v_permlane16_swap_b32 v8, v9")
    e("v_mov_b32 v11, v6")
    e("v_max_u32 v10, v8, v9")
    e("s_mov_b64 exec, 1")
    e(f"buffer_store_dwordx2 v[10:11], v1, s[56:59], s31 offen {ST}")
    e("s_mov_b64 exec, -1")
    g.stamp(2)
    e("s_cmp_eq_u32 s25, 1")
    e("s_cbranch_scc0 L_poll")
    e("v_lshlrev_b32 v13, 7, v0")
    e(f"s_mov_b32 s30, {W_R}")
    e("v_and_b32 v14, 1, v0")
    e("v_lshlrev_b32 v92, 7, v14")
    for r in range(1, 4):
        e(f"v_add_u32 v{92+r}, {32*r}, v92")
    e("v_lshrrev_b32 v15, 1, v0")
    e("v_lshlrev_b32 v15, 7, v15")
    e("v_lshl_add_u32 v15, v14, 4, v15")
    e("s_sub_u32 s31, s21, 28")
    e("s_lshl_b32 s31, s31, 13")
    e(f"s_add_u32 s31, s31, {W_M}")
    e("s_add_u32 s32, s31, 4096")
    e(f"s_mov_b32 s34, {a.spin}")
    if a.agdelay < 0: e("s_waitcnt vmcnt(0)")
    elif a.agdelay: e(f"s_sleep {a.agdelay}")
    g.lab("L_ag")
    e(f"buffer_load_dwordx2 v[8:9], v13, s[56:59], s30 offen {LD}")
    e("s_waitcnt vmcnt(0)")
    e("v_cmp_ne_u32 vcc, v9, v6")
    e("s_cbranch_vccz L_agok")
    e("s_sub_u32 s34, s34, 1")
    e("s_cmp_lg_u32 s34, 0")
    e("s_cbranch_scc1 L_ag")
    g.lab("L_agok")
    g.stamp(11)
    if a.diag: e(f"s_sub_u32 s85, {a.spin+1}, s34")
    e("v_max_u32_dpp v8, v8, v8 quad_perm:[1,0,3,2] row_mask:0xf bank_mask:0xf")
    e("s_nop 1")
    e("v_max_u32_dpp v8, v8, v8 quad_perm:[2,3,0,1] row_mask:0xf bank_mask:0xf")
    e("s_nop 1")
    e("v_max_u32_dpp v8, v8, v8 row_half_mirror row_mask:0xf bank_mask:0xf")
    e("v_xor_b32 v8, 0xf800, v8")
    for r in range(4):
        e(f"ds_bpermute_b32 v{96+r}, v{92+r}, v8")
    e("s_waitcnt lgkmcnt(0)")
    e(f"buffer_store_dwordx4 v[96:99], v15, s[56:59], s31 offen {ST}")
    e(f"buffer_store_dwordx4 v[96:99], v15, s[56:59], s32 offen {ST}")
    g.stamp(8)
    g.lab("L_poll")
    e(f"v_and_b32 v12, {TAGM}, v6")
    e("v_readfirstlane_b32 s33, v6")
    e(f"v_mov_b32 v11, {L_T}")
    e("ds_write_b32 v11, v12")
    e(f"s_mov_b32 s34, {a.spin*4}")
    e("s_and_b32 s36, s33, 0x7ff")
    e("s_mov_b32 s37, s36")
    if a.freerun:
        e("s_not_b64 s[38:39], s[36:37]")
        for k in range(4): e(f"s_mov_b64 s[{MB+2*k}:{MB+2*k+1}], s[38:39]")
    g.lab("L_pl")
    e(f"s_load_dwordx8 s[{MB}:{MB+7}], s[52:53], 0 glc")
    if a.freerun: e(f"s_sleep {a.freerun}")
    else: e("s_waitcnt lgkmcnt(0)")
    for k in range(4): e(f"s_mov_b64 s[{CP+2*k}:{CP+2*k+1}], s[{MB+2*k}:{MB+2*k+1}]")
    e(f"s_xor_b64 s[38:39], s[{CP}:{CP+1}], s[36:37]")
    e(f"s_xor_b64 s[42:43], s[{CP+2}:{CP+3}], s[36:37]")
    e("s_or_b64 s[38:39], s[38:39], s[42:43]")
    e(f"s_xor_b64 s[42:43], s[{CP+4}:{CP+5}], s[36:37]")
    e("s_or_b64 s[38:39], s[38:39], s[42:43]")
    e(f"s_xor_b64 s[42:43], s[{CP+6}:{CP+7}], s[36:37]")
    e("s_or_b64 s[38:39], s[38:39], s[42:43]")
    e("s_or_b32 s38, s38, s39")
    e("s_and_b32 s38, s38, 0x7ff")
    e("s_cbranch_scc0 L_pok")
    e("s_sub_u32 s34, s34, 1")
    e("s_cmp_lg_u32 s34, 0")
    e("s_cbranch_scc1 L_pl")
    g.lab("L_pok")
    e("s_cmp_eq_u32 s25, 1")
    e("s_cbranch_scc1 L_nox")
    e(f"s_mov_b32 m0, {L_X}")
    for b in range(8):
        e(f"s_and_b32 s38, s{CP+b}, 0xf800")
        e(f"buffer_load_dwordx4 v{84+b}, s[44:47], s38 offen {a.xsnt} lds")
        if b < 7:
            e(f"s_add_u32 m0, m0, {XP}")
    g.stamp(3)
    e("s_barrier")
    g.lab("L_nox")
    e("s_lshr_b32 s38, s2, 5")
    e("s_mov_b32 m0, s38")
    e("s_lshl_b32 s38, s38, 16")
    e(f"s_movrels_b32 s40, s{CP}")
    e("s_and_b32 s39, s40, 0xf800")
    e("s_add_u32 s39, s39, s38")
    e("s_and_b32 s38, s2, 31")
    e("s_lshl_b32 s38, s38, 6")
    e("s_add_u32 s39, s39, s38")
    e("v_and_b32 v8, 7, v0")
    e("v_lshlrev_b32 v8, 3, v8")
    e("v_bfe_u32 v9, v0, 4, 1")
    e("v_lshl_add_u32 v8, v9, 2, v8")
    e("v_lshrrev_b32 v9, 5, v0")
    e("v_lshl_add_u32 v8, v9, 1, v8")
    e("s_cmp_eq_u32 s25, 1")
    e("s_cbranch_scc1 L_nobar")
    e("s_waitcnt vmcnt(0) lgkmcnt(0)")
    g.stamp(4)
    e("s_barrier")
    e("s_barrier")
    g.lab("L_nobar")
    e("buffer_load_ushort v10, v8, s[44:47], s39 offen")
    srd(e, 48, "s14", "s15", XBYTES)
    e("s_cmp_lt_u32 s26, 2")
    e("s_cbranch_scc0 L_nocopy")
    e("s_lshr_b32 m0, s27, 3")
    e("s_and_b32 s30, s27, 7")
    e(f"s_movrels_b32 s31, s{CP}")
    e("s_lshl_b32 s30, s30, 2")
    e("s_bfe_u32 s31, s31, 0x5000b")
    e("s_sub_u32 s31, s31, s30")
    e("s_mov_b32 s32, 0x7f807f80")
    e("s_mov_b32 s35, 0x00400040")
    for tk in range(4):
        e(f"s_cmp_eq_u32 s31, {tk}")
        e(f"s_cbranch_scc1 L_cp{tk}")
        for n in (2*tk, 2*tk+1):
            for r in range(4):
                v = 16+4*n+r
                e(f"v_and_b32 v48, s32, v{v}")
                e("v_add_u32 v48, 0x00800080, v48")
                e("v_lshrrev_b32 v48, 9, v48")
                e(f"v_and_or_b32 v{v}, v48, s35, v{v}")
            e(f"buffer_store_dwordx4 v[{16+4*n}:{19+4*n}], v7, s[48:51], {'s28' if n < 4 else 's29'} offen offset:{(n%4)*1024} {a.ost}")
        g.lab(f"L_cp{tk}")
    g.lab("L_nocopy")
    e("v_mov_b32 v11, s40")
    e("v_ashrrev_i32 v13, 31, v11")
    e("v_not_b32 v13, v13")
    e("v_or_b32 v13, 0x80000000, v13")
    e("v_xor_b32 v11, v11, v13")
    e("v_and_b32 v11, 0xffff0000, v11")
    e("v_mul_f32 v11, 0xbfb8aa3b, v11")
    e("v_exp_f32 v11, v11")
    e(f"s_mul_i32 s30, s2, 7168")
    e("v_add_f32 v11, 1.0, v11")
    e("v_rcp_f32 v11, v11")
    e(f"s_add_u32 s30, s30, {W_Y}")
    e("v_cvt_pk_bf16_f32 v11, v11, v11")
    e("s_add_u32 s31, s30, 4096")
    e("v_and_b32 v11, 0xffff0000, v11")
    e("s_or_b32 s41, s41, s25")
    e("s_cmp_eq_u32 s41, 1")
    e("s_cbranch_scc1 L_hint")
    e("s_barrier")
    e("s_barrier")
    if a.rdelay > 0: e(f"s_sleep {a.rdelay}")
    e("s_branch L_red")
    g.lab("L_hint")
    e(f"s_add_u32 s32, s30, {a.hintg*128}")
    e("s_add_u32 s52, s56, s32")
    e("s_addc_u32 s53, s57, 0")
    e(f"s_mov_b32 s34, {a.spin}")
    e(f"s_and_b32 s36, s33, {TAGM}")
    g.lab("L_hl")
    e("s_load_dword s35, s[52:53], 0 glc")
    e("s_waitcnt lgkmcnt(0)")
    e(f"s_and_b32 s35, s35, {TAGM}")
    e("s_cmp_eq_u32 s35, s36")
    e("s_cbranch_scc1 L_red")
    e("s_sub_u32 s34, s34, 1")
    e("s_cmp_lg_u32 s34, 0")
    e("s_cbranch_scc1 L_hl")
    g.lab("L_red")
    g.stamp(5)
    e(f"s_mov_b32 s34, {a.spin}")
    g.lab("L_rl")
    for n in range(7):
        so = "s30" if n < 4 else "s31"
        e(f"buffer_load_dwordx4 v[{16+4*n}:{19+4*n}], v7, s[56:59], {so} offen offset:{(n%4)*1024} {LD}")
    for n in range(7):
        e(f"s_waitcnt vmcnt({6-n})")
        for r in range(4):
            v = 16+4*n+r
            if n == 0 and r == 0: e(f"v_xor_b32 v9, v{v}, v12")
            else: e(f"v_bitop3_b32 v9, v9, v{v}, v12 bitop3:0xf6")
        if n:
            e(f"v_pk_add_f32 v[16:17], v[16:17], v[{16+4*n}:{17+4*n}]")
            e(f"v_pk_add_f32 v[18:19], v[18:19], v[{18+4*n}:{19+4*n}]")
    e(f"v_and_b32 v9, {TAGM}, v9")
    e("v_cmp_ne_u32 vcc, 0, v9")
    e("s_cbranch_vccz L_rok")
    e("s_sub_u32 s34, s34, 1")
    e("s_cmp_lg_u32 s34, 0")
    e("s_cbranch_scc1 L_rl")
    g.lab("L_rok")
    g.stamp(6)
    if a.diag: e(f"s_sub_u32 s84, {a.spin+1}, s34")
    e("s_nop 0")
    e("v_permlane32_swap_b32 v16, v17")
    e("v_permlane32_swap_b32 v18, v19")
    e("v_lshlrev_b32 v10, 16, v10")
    e("v_add_f32 v16, v16, v17")
    e("v_add_f32 v18, v18, v19")
    e("s_nop 1")
    e("v_permlane16_swap_b32 v16, v18")
    e("s_nop 0")
    e("v_add_f32 v16, v16, v18")
    e("s_nop 1")
    e("v_add_f32_dpp v16, v16, v16 row_ror:8 row_mask:0xf bank_mask:0xf")
    e("s_mov_b32 exec_lo, 0x00ff00ff")
    e("s_mov_b32 exec_hi, 0x00ff00ff")
    e("v_cvt_pk_bf16_f32 v16, v16, v16")
    e("v_and_b32 v16, 0xffff0000, v16")
    e("v_mul_f32 v16, v16, v11")
    e("v_cvt_pk_bf16_f32 v16, v16, v16")
    e("v_and_b32 v16, 0xffff0000, v16")
    e("v_fma_f32 v16, v10, 0, v16")
    e("v_add_f32 v16, v10, v16")
    e("v_cvt_pk_bf16_f32 v16, v16, v16")
    e(f"buffer_store_short v16, v8, s[48:51], s39 offen {a.ost2}")
    e(f"s_cmp_eq_u32 s2, {28*8 + SP}")
    e("s_cbranch_scc0 L_nobump")
    e("s_mov_b64 exec, 1")
    e(f"s_mov_b32 s30, {W_E}")
    e("buffer_store_dword v6, v1, s[56:59], s30 offen sc1")
    g.lab("L_nobump")
    g.stamp(7)
    if a.hold:
        e("s_cmp_eq_u32 s2, 1")
        e("s_cbranch_scc0 L_end")
        g.lab("L_hold")
        e("s_memrealtime s[68:69]")
        e("s_waitcnt lgkmcnt(0)")
        e("s_sub_u32 s68, s68, s86")
        e(f"s_cmp_lt_u32 s68, {a.hold}")
        e("s_cbranch_scc1 L_hold")
    if a.diag:
        g.lab("L_diag")
        e("s_waitcnt vmcnt(0) lgkmcnt(0)")
        g.stamp(10)
        e("s_mov_b64 exec, 1")
        e(f"s_add_u32 s56, s18, {W_DIAG}")
        e("s_addc_u32 s57, s19, 0")
        e("s_mov_b32 s58, 0x100000")
        e("s_mov_b32 s59, 0x20000")
        e("s_mul_i32 s30, s2, 5"); e("s_add_u32 s30, s30, s3"); e("s_lshl_b32 s30, s30, 6")
        e("v_mov_b32 v1, 0")
        e("s_mov_b32 s70, s86")
        for k in range(16):
            e(f"v_mov_b32 v2, s{70+k}")
            e(f"buffer_store_dword v2, v1, s[56:59], s30 offen offset:{4*k}")
    g.lab("L_end")
    e("s_endpgm")

    hdr = open("standalone__moe_arch_mod__sampling.s.ref").read().split("; Override launch")[0] if not a.nohdr else ""
    src = hdr + f"; @launch grid=(256,1,1) block=(320,1,1) lds={a.lds or L_END}\n"
    src += f""".amdgcn_target "amdgcn-amd-amdhsa--gfx950"
.text
.globl {KN}
.p2align 8
.type {KN},@function
{KN}:
""" + "\n".join(x for x in g.L if x) + f"""
.section .rodata,"a"
.p2align 6
.amdhsa_kernel {KN}
  .amdhsa_next_free_vgpr {a.vgpr}
  .amdhsa_next_free_sgpr 96
  .amdhsa_accum_offset {min(a.vgpr,256)}
  .amdhsa_group_segment_fixed_size 0
  .amdhsa_kernarg_size 64
  .amdhsa_user_sgpr_count 2
  .amdhsa_user_sgpr_kernarg_segment_ptr 1
  .amdhsa_system_sgpr_workgroup_id_x 1
  .amdhsa_float_denorm_mode_32 3
.end_amdhsa_kernel
"""
    return src

def parse(argv):
    p = argparse.ArgumentParser()
    p.add_argument("-o", default="/dev/stdout")
    for k, v in dict(diag=0, depth=5, sdepth=0, spin=20000, wsoff=0, nohdr=1, hold=0, special=1, rbar=1, lds=0, vgpr=120,
                     tail=4, c1=4, gearly=3, rdelay=0, agdelay=-1, freerun=1, pretouch=1, hintg=24).items():
        p.add_argument("--" + k, type=int, default=v)
    for k, v in dict(nt="nt", st="sc1", ld="sc1", ost="", ost2="", xnt="nt", wrnt="", xsnt="").items():
        p.add_argument("--" + k, default=v)
    p.add_argument("--only", default="")
    a = p.parse_args(argv)
    for k in ("nt", "st", "ld", "ost", "ost2", "xnt", "wrnt", "xsnt"):
        setattr(a, k, getattr(a, k).replace("+", " ").replace("none", ""))
    a.only = [int(x) for x in a.only.split(",") if x]
    return a

if __name__ == "__main__":
    a = parse(sys.argv[1:])
    open(a.o, "w").write(gen(a))
```
